```python
import torch

def _softmax(x, axis=-1):
    return torch.softmax(x, dim=axis)
def _gelu(x):
    return torch.nn.functional.gelu(x, approximate="tanh")
def _silu(x):
    return torch.nn.functional.silu(x)
def _sigmoid(x):
    return torch.sigmoid(x)
def _layernorm(x, axis=-1, eps=1e-5):
    m = x.mean(dim=axis, keepdim=True)
    v = x.var(dim=axis, keepdim=True, unbiased=False)
    return (x - m) / torch.sqrt(v + eps)
def _scatter_add(tgt, idx, src, axis=0):
    return tgt.clone().index_add_(axis, idx, src)
def _segment_sum(src, seg, n):
    out = torch.zeros((n,) + src.shape[1:], dtype=src.dtype)
    return out.index_add_(0, seg, src)
def _pad(x, pw):
    flat = tuple(v for pair in reversed(pw) for v in pair)
    return torch.nn.functional.pad(x, flat)

kernel_name = 'concat_heads__gqa_block_cached__gqa_block_cached__decode'

def setup_inputs():

    _w = (lambda a: (lambda t: t.to(torch.bfloat16) if t.is_floating_point() else t)(torch.as_tensor(a)))
    def _A_setup():
        B, Sq, D = 2, 1, 640
        Hq, Hkv, Sk, Dh = 32, 32, 4096, 128
        assert Hq % Hkv == 0, (Hq, Hkv)
        return {
            "x": _w((lambda *s: torch.randn(*s, dtype=torch.bfloat16) * 0.8)(B, Sq, D)),
            "k_cache": _w((lambda *s: torch.randn(*s, dtype=torch.bfloat16) * 0.8)(B, Hkv, Sk, Dh)),
            "v_cache": _w((lambda *s: torch.randn(*s, dtype=torch.bfloat16) * 0.05)(B, Hkv, Sk, Dh)),
            "wq": _w((lambda *s: torch.randn(*s, dtype=torch.bfloat16) * 0.8)(D, Hq * Dh) * (D ** -0.5)),
            "wo": _w((lambda *s: torch.randn(*s, dtype=torch.bfloat16) * 0.05)(Hq * Dh, D) * ((Hq * Dh) ** -0.5)),
        }
    _A_in = _A_setup()

    def _B_setup():
        B, Sq, D = 2, 1, 640
        Hq, Hkv, Sk, Dh = 32, 32, 4096, 128
        assert Hq % Hkv == 0, (Hq, Hkv)
        return {
            "x": _w((lambda *s: torch.randn(*s, dtype=torch.bfloat16) * 0.8)(B, Sq, D)),
            "k_cache": _w((lambda *s: torch.randn(*s, dtype=torch.bfloat16) * 0.8)(B, Hkv, Sk, Dh)),
            "v_cache": _w((lambda *s: torch.randn(*s, dtype=torch.bfloat16) * 0.05)(B, Hkv, Sk, Dh)),
            "wq": _w((lambda *s: torch.randn(*s, dtype=torch.bfloat16) * 0.8)(D, Hq * Dh) * (D ** -0.5)),
            "wo": _w((lambda *s: torch.randn(*s, dtype=torch.bfloat16) * 0.05)(Hq * Dh, D) * ((Hq * Dh) ** -0.5)),
        }
    _B_in = _B_setup()

    return {
        "A_x": _A_in["x"],
        "A_k_cache": _A_in["k_cache"],
        "A_v_cache": _A_in["v_cache"],
        "A_wq": _A_in["wq"],
        "A_wo": _A_in["wo"],
        "B_x": _B_in["x"],
        "B_k_cache": _B_in["k_cache"],
        "B_v_cache": _B_in["v_cache"],
        "B_wq": _B_in["wq"],
        "B_wo": _B_in["wo"],
    }

def reference(A_x, A_k_cache, A_v_cache, A_wq, A_wo, B_x, B_k_cache, B_v_cache, B_wq, B_wo):
    def _A_ref(x, k_cache, v_cache, wq, wo):
        B, Sq, D = x.shape
        Hq, Dh = 32, 128
        Hkv = k_cache.shape[1]
        rep = Hq // Hkv
        q = (lambda x, *d: x.permute(*d))((x @ wq).reshape(B, Sq, Hq, Dh), 0, 2, 1, 3)
        k = (lambda x, n, axis: torch.repeat_interleave(x, n, dim=axis))(k_cache, rep, axis=1)
        v = (lambda x, n, axis: torch.repeat_interleave(x, n, dim=axis))(v_cache, rep, axis=1)
        scores = torch.einsum("bhqd,bhkd->bhqk", q, k) * (Dh ** -0.5)
        p = _softmax(scores, axis=-1)
        o = torch.einsum("bhqk,bhkd->bhqd", p, v)
        return (lambda x, *d: x.permute(*d))(o, 0, 2, 1, 3).reshape(B, Sq, Hq * Dh) @ wo

    def _B_ref(x, k_cache, v_cache, wq, wo):
        B, Sq, D = x.shape
        Hq, Dh = 32, 128
        Hkv = k_cache.shape[1]
        rep = Hq // Hkv
        q = (lambda x, *d: x.permute(*d))((x @ wq).reshape(B, Sq, Hq, Dh), 0, 2, 1, 3)
        k = (lambda x, n, axis: torch.repeat_interleave(x, n, dim=axis))(k_cache, rep, axis=1)
        v = (lambda x, n, axis: torch.repeat_interleave(x, n, dim=axis))(v_cache, rep, axis=1)
        scores = torch.einsum("bhqd,bhkd->bhqk", q, k) * (Dh ** -0.5)
        p = _softmax(scores, axis=-1)
        o = torch.einsum("bhqk,bhkd->bhqd", p, v)
        return (lambda x, *d: x.permute(*d))(o, 0, 2, 1, 3).reshape(B, Sq, Hq * Dh) @ wo

    a = _A_ref(A_x, A_k_cache, A_v_cache, A_wq, A_wo)
    b = _B_ref(B_x, B_k_cache, B_v_cache, B_wq, B_wo)
    return torch.concatenate([a, b], axis=-1)
```

```python
import sys, math, struct

NAME = "concat_heads__gqa_block_cached__gqa_block_cached__decode"


def f32bits(x):
    return struct.unpack("<I", struct.pack("<f", x))[0]


def bitrev4(t):
    return ((t & 1) << 3) | ((t & 2) << 1) | ((t & 4) >> 1) | ((t & 8) >> 3)


class Asm:
    def __init__(self):
        self.lines = []
        self.vm = []

    def e(self, s):
        self.lines.append("    " + s)

    def c(self, s):
        self.lines.append("    ; " + s)

    def label(self, s):
        self.lines.append(s + ":")

    def raw(self, s):
        self.lines.append(s)

    def vmem(self, s, tag):
        self.e(s)
        self.vm.append(tag)
        assert len(self.vm) <= 63, "too many outstanding vmem ops"

    def wait(self, tags):
        if not isinstance(tags, (list, set)):
            tags = [tags]
        last = -1
        for i, t in enumerate(self.vm):
            if t in tags:
                last = i
        if last < 0:
            return
        n = len(self.vm) - 1 - last
        self.e(f"s_waitcnt vmcnt({n})")
        self.vm = self.vm[last + 1:]

    def text(self):
        return "\n".join(self.lines) + "\n"


def vr(a, n=None):
    if n is None or n == 1:
        return f"v{a}"
    return f"v[{a}:{a+n-1}]"


def sr(a, n=None):
    if n is None or n == 1:
        return f"s{a}"
    return f"s[{a}:{a+n-1}]"


def gen(W=8, D=16, interleave=False, kv_hint="", w_hint=""):
    a = Asm()
    KPW = 2048 // W
    NT = KPW // 4
    NB = KPW // 64
    NWQ = 160 // W
    RG = 32 // W
    NWO = RG * 5
    assert NWQ == NWO
    assert D % 4 == 0
    CSCALE = (128 ** -0.5) * math.log2(math.e)

    QP = 0
    QF = QP + W * 512
    ML = QF + W * 256
    OP = ML + 256
    YP = OP + W * 512
    LDS_BYTES = YP + W * 2560

    vTID = 0
    vLANE = 1
    vC = 2
    vR = 3
    vKOFF = 4
    vWQOFF = 5
    vWOOFF = 6
    vXOFF = 7
    vX0 = 8
    vX1 = 9
    vT0 = 10
    vQ = 16
    vMASK = 20
    vACC = 24
    vS = 28
    vOH = 32
    vT = 48
    vR2 = 52
    vU = 56
    vBUF = 64
    vW = vBUF + D * 4
    vY = vW + NWQ * 4
    VGPRS = vY + 20
    assert VGPRS <= (512 // max(1, (W // 4))) , VGPRS

    sWG = 2
    sKA = 4
    sP = 8
    sOUT = 20
    sBLK, sH, sB, sSPLIT, sWAVE = 26, 27, 28, 29, 30
    sIDX = 31
    sK = 32
    sV = 36
    sWQ = 40
    sWO = 44
    sX = 48
    sWS = 52
    sOFF = 56
    sT = 57
    sM1 = 64
    sM0 = 66
    sCS = 68
    sEX = 70
    SGPRS = 72

    a.raw(f"; @launch kernel=main_kernel grid=(256,1,1) block=({W*64},1,1) lds={LDS_BYTES}")
    a.raw(f"; @launch kernel=red_kernel grid=(40,1,1) block=(256,1,1) lds=1024")
    a.raw('.amdgcn_target "amdgcn-amd-amdhsa--gfx950"')
    a.raw(".text")
    a.raw(".globl main_kernel")
    a.raw(".p2align 8")
    a.raw(".type main_kernel,@function")
    a.label("main_kernel")
    a.e(f"s_cmp_ge_u32 s{sWG}, 256")
    a.e("s_cbranch_scc1 L_main_end")
    a.e(f"s_and_b32 s{sT}, s{sWG}, 7")
    a.e(f"s_lshr_b32 s{sT+1}, s{sWG}, 3")
    a.e(f"s_lshl_b32 s{sT}, s{sT}, 3")
    a.e(f"s_lshr_b32 s{sT+2}, s{sT+1}, 2")
    a.e(f"s_add_u32 s{sT}, s{sT}, s{sT+2}")
    a.e(f"s_lshr_b32 s{sBLK}, s{sT}, 5")
    a.e(f"s_and_b32 s{sH}, s{sT}, 31")
    a.e(f"s_lshr_b32 s{sB}, s{sT+1}, 1")
    a.e(f"s_and_b32 s{sB}, s{sB}, 1")
    a.e(f"s_and_b32 s{sSPLIT}, s{sT+1}, 1")
    a.e(f"s_mul_i32 s{sT}, s{sBLK}, 40")
    a.e(f"s_add_u32 s{sKA}, s0, s{sT}")
    a.e(f"s_addc_u32 s{sKA+1}, s1, 0")
    a.e(f"s_load_dwordx8 {sr(sP,8)}, {sr(sKA,2)}, 0")
    a.e(f"s_load_dwordx2 {sr(sP+8,2)}, {sr(sKA,2)}, 32")
    a.e(f"s_load_dwordx4 {sr(sOUT,4)}, s[0:1], 80")
    a.e(f"s_load_dwordx2 {sr(sOUT+4,2)}, s[0:1], 96")
    a.e(f"v_and_b32 v{vLANE}, 63, v{vTID}")
    a.e(f"v_lshrrev_b32 v{vT0}, 6, v{vTID}")
    a.e(f"v_and_b32 v{vC}, 15, v{vTID}")
    a.e(f"v_readfirstlane_b32 s{sWAVE}, v{vT0}")
    a.e(f"v_lshrrev_b32 v{vR}, 4, v{vLANE}")
    a.e(f"s_lshl_b32 s{sIDX}, s{sBLK}, 1")
    a.e(f"s_add_u32 s{sIDX}, s{sIDX}, s{sB}")
    a.e(f"s_lshl_b32 s{sIDX}, s{sIDX}, 5")
    a.e(f"s_add_u32 s{sIDX}, s{sIDX}, s{sH}")
    a.e(f"s_lshl_b32 s{sIDX}, s{sIDX}, 1")
    a.e(f"s_add_u32 s{sIDX}, s{sIDX}, s{sSPLIT}")
    if interleave:
        a.e(f"v_lshlrev_b32 v{vKOFF}, 4, v{vTID}")
        TSTRIDE = W * 1024
    else:
        a.e(f"v_lshlrev_b32 v{vKOFF}, 4, v{vLANE}")
        a.e(f"s_lshl_b32 s{sT}, s{sWAVE}, {int(math.log2(KPW*256))}")
        a.e(f"v_add_u32 v{vKOFF}, s{sT}, v{vKOFF}")
        TSTRIDE = 1024
    a.e(f"s_mul_i32 s{sT}, s{sWAVE}, {NWQ*4}")
    a.e(f"v_add_u32 v{vWQOFF}, s{sT}, v{vR}")
    a.e(f"v_lshlrev_b32 v{vWQOFF}, 13, v{vWQOFF}")
    a.e(f"v_lshl_add_u32 v{vWQOFF}, v{vC}, 4, v{vWQOFF}")
    a.e(f"v_lshl_add_u32 v{vXOFF}, v{vC}, 2, v{vR}")
    a.e(f"v_add_u32 v{vXOFF}, s{sT}, v{vXOFF}")
    a.e(f"v_lshlrev_b32 v{vXOFF}, 1, v{vXOFF}")
    a.e(f"s_mul_i32 s{sT}, s{sWAVE}, {RG*4}")
    a.e(f"v_add_u32 v{vWOOFF}, s{sT}, v{vR}")
    a.e(f"v_mul_u32_u24 v{vWOOFF}, 1280, v{vWOOFF}")
    a.e(f"v_lshl_add_u32 v{vWOOFF}, v{vC}, 4, v{vWOOFF}")
    a.e(f"v_and_b32 v{vT0}, 1, v{vC}")
    a.e(f"v_lshlrev_b32 v{vT0}, 4, v{vT0}")
    a.e(f"v_mov_b32 v{vT0+1}, 0xffff")
    a.e(f"v_lshlrev_b32 v{vT0+1}, v{vT0}, v{vT0+1}")
    a.e(f"v_lshrrev_b32 v{vT0+2}, 1, v{vC}")
    for j in range(4):
        a.e(f"v_cmp_eq_u32 vcc, {j}, v{vT0+2}")
        a.e("s_nop 1")
        a.e(f"v_cndmask_b32 v{vMASK+j}, 0, v{vT0+1}, vcc")
    a.e(f"s_mov_b32 s{sM1}, 0xcccccccc")
    a.e(f"s_mov_b32 s{sM1+1}, 0xcccccccc")
    a.e(f"s_mov_b32 s{sM0}, 0xaaaaaaaa")
    a.e(f"s_mov_b32 s{sM0+1}, 0xaaaaaaaa")
    a.e(f"s_mov_b32 s{sCS}, 0x{f32bits(CSCALE):08x}")
    a.e("s_waitcnt lgkmcnt(0)")
    a.e(f"s_mul_i32 s{sT}, s{sB}, 1280")
    a.e(f"s_add_u32 s{sX}, s{sP}, s{sT}")
    a.e(f"s_addc_u32 s{sX+1}, s{sP+1}, 0")
    a.e(f"s_mov_b32 s{sX+2}, 1280")
    a.e(f"s_mov_b32 s{sX+3}, 0x20000")
    a.e(f"s_lshl_b32 s{sT}, s{sH}, 8")
    a.e(f"s_add_u32 s{sWQ}, s{sP+6}, s{sT}")
    a.e(f"s_addc_u32 s{sWQ+1}, s{sP+7}, 0")
    a.e(f"s_sub_u32 s{sWQ+2}, {640*8192}, s{sT}")
    a.e(f"s_mov_b32 s{sWQ+3}, 0x20000")
    a.e(f"s_and_b32 s{sT}, s{sIDX}, 127")
    a.e(f"s_lshl_b32 s{sT}, s{sT}, 19")
    a.e(f"s_add_u32 s{sK}, s{sP+2}, s{sT}")
    a.e(f"s_addc_u32 s{sK+1}, s{sP+3}, 0")
    a.e(f"s_mov_b32 s{sK+2}, {512*1024}")
    a.e(f"s_mov_b32 s{sK+3}, 0x20000")
    a.e(f"s_add_u32 s{sV}, s{sP+4}, s{sT}")
    a.e(f"s_addc_u32 s{sV+1}, s{sP+5}, 0")
    a.e(f"s_mov_b32 s{sV+2}, {512*1024}")
    a.e(f"s_mov_b32 s{sV+3}, 0x20000")
    a.e(f"s_mul_i32 s{sT}, s{sH}, {128*1280}")
    a.e(f"s_add_u32 s{sWO}, s{sP+8}, s{sT}")
    a.e(f"s_addc_u32 s{sWO+1}, s{sP+9}, 0")
    a.e(f"s_mov_b32 s{sWO+2}, {128*1280}")
    a.e(f"s_mov_b32 s{sWO+3}, 0x20000")
    a.e(f"s_mov_b32 s{sWS}, s{sOUT+4}")
    a.e(f"s_mov_b32 s{sWS+1}, s{sOUT+5}")
    a.e(f"s_mov_b32 s{sWS+2}, {2*1024*1024}")
    a.e(f"s_mov_b32 s{sWS+3}, 0x20000")

    stream = [("K", t) for t in range(NT)] + [("V", t) for t in range(NT)]
    state = {"next": 0}

    def issue_stream(n):
        for _ in range(n):
            i = state["next"]
            if i >= len(stream):
                return
            kind, t = stream[i]
            buf = vBUF + (i % D) * 4
            srd = sK if kind == "K" else sV
            off = t * TSTRIDE
            imm = off % 4096
            so = off - imm
            if so == 0:
                sos = "0"
            else:
                a.e(f"s_mov_b32 s{sOFF}, {so}")
                sos = f"s{sOFF}"
            immS = f" offset:{imm}" if imm else ""
            a.vmem(f"buffer_load_dwordx4 {vr(buf,4)}, v{vKOFF}, {sr(srd,4)}, {sos} offen{immS}{kv_hint}", ("S", i))
            state["next"] = i + 1

    a.vmem(f"buffer_load_ushort v{vX0}, v{vXOFF}, {sr(sX,4)}, 0 offen", "x")
    if NWQ > 16:
        a.vmem(f"buffer_load_ushort v{vX1}, v{vXOFF}, {sr(sX,4)}, 0 offen offset:128", "x")
    for i in range(NWQ):
        if i == 0:
            sos = "0"
        else:
            a.e(f"s_mov_b32 s{sOFF}, {i*32768}")
            sos = f"s{sOFF}"
        a.vmem(f"buffer_load_dwordx4 {vr(vW+4*i,4)}, v{vWQOFF}, {sr(sWQ,4)}, {sos} offen{w_hint}", ("wq", i))
    issue_stream(D)
    a.wait("x")
    a.e(f"v_lshl_or_b32 v{vX0}, v{vX0}, 16, v{vX0}")
    if NWQ > 16:
        a.e(f"v_lshl_or_b32 v{vX1}, v{vX1}, 16, v{vX1}")
    a.e("s_nop 1")

    def onehot(dst, src, lane):
        for j in range(4):
            a.e(f"v_and_b32_dpp v{dst+j}, v{src}, v{vMASK+j} row_newbcast:{lane} row_mask:0xf bank_mask:0xf")

    first = True
    for g0 in range(0, NWQ, 4):
        n = min(4, NWQ - g0)
        for t in range(n):
            i = g0 + t
            onehot(vOH + 4 * t, vX0 if i < 16 else vX1, i % 16)
        a.wait(("wq", g0 + n - 1))
        a.e("s_nop 1")
        for t in range(n):
            i = g0 + t
            cs = "0" if first else vr(vACC, 4)
            a.e(f"v_mfma_f32_16x16x32_bf16 {vr(vACC,4)}, {vr(vOH+4*t,4)}, {vr(vW+4*i,4)}, {cs}")
            first = False
    for rg in range(RG):
        if rg == 0:
            sos = "0"
        else:
            a.e(f"s_mov_b32 s{sOFF}, {rg*5120}")
            sos = f"s{sOFF}"
        for seg in range(5):
            immS = f" offset:{seg*256}" if seg else ""
            a.vmem(f"buffer_load_dwordx4 {vr(vW+4*(rg*5+seg),4)}, v{vWOOFF}, {sr(sWO,4)}, {sos} offen{immS}{w_hint}", ("wo", rg * 5 + seg))
    a.e(f"v_lshlrev_b32 v{vT0}, 5, v{vC}")
    a.e(f"v_lshl_add_u32 v{vT0}, v{vR}, 4, v{vT0}")
    a.e(f"s_lshl_b32 s{sT}, s{sWAVE}, 9")
    a.e(f"v_add_u32 v{vT0+1}, s{sT}, v{vT0}")
    a.e("s_nop 7")
    a.e("s_mov_b32 exec_hi, 0")
    a.e(f"ds_write_b128 v{vT0+1}, {vr(vACC,4)} offset:{QP}")
    a.e("s_mov_b64 exec, -1")
    a.e("s_waitcnt lgkmcnt(0)")
    a.e("s_barrier")
    a.e(f"v_lshlrev_b32 v{vT0+2}, 3, v{vLANE}")
    for w in range(W):
        a.e(f"ds_read_b64 {vr(vOH+2*(w%8),2)}, v{vT0+2} offset:{QP+w*512}")
        if w % 8 == 7:
            a.e("s_waitcnt lgkmcnt(0)")
            for k in range(8):
                ww = w - 7 + k
                if ww == 0:
                    a.e(f"v_mov_b32 v{vU}, v{vOH}")
                    a.e(f"v_mov_b32 v{vU+1}, v{vOH+1}")
                else:
                    a.e(f"v_add_f32 v{vU}, v{vU}, v{vOH+2*k}")
                    a.e(f"v_add_f32 v{vU+1}, v{vU+1}, v{vOH+2*k+1}")
    a.e(f"v_cvt_pk_bf16_f32 v{vU}, v{vU}, v{vU+1}")
    a.e(f"s_lshl_b32 s{sT}, s{sWAVE}, 8")
    a.e(f"v_lshlrev_b32 v{vT0+2}, 2, v{vLANE}")
    a.e(f"v_add_u32 v{vT0+2}, s{sT}, v{vT0+2}")
    a.e(f"ds_write_b32 v{vT0+2}, v{vU} offset:{QF}")
    a.e(f"v_lshlrev_b32 v{vT0+2}, 4, v{vC}")
    a.e(f"v_add_u32 v{vT0+2}, s{sT}, v{vT0+2}")
    a.e("s_waitcnt lgkmcnt(0)")
    a.e(f"ds_read_b128 {vr(vQ,4)}, v{vT0+2} offset:{QF}")
    a.e("s_waitcnt lgkmcnt(0)")

    DPPF = "row_mask:0xf bank_mask:0xf"
    for grp in range(NT // 4):
        i0 = grp * 4
        a.c(f"K group {grp}")
        a.wait(("S", i0 + 3))
        for j in range(4):
            for t in range(4):
                buf = vBUF + ((i0 + t) % D) * 4
                cs = "0" if j == 0 else f"v{vT+t}"
                a.e(f"v_dot2_f32_bf16 v{vT+t}, v{buf+j}, v{vQ+j}, {cs}")
        issue_stream(4)
        a.e("s_nop 2")
        a.e(f"v_add_f32_dpp v{vT}, v{vT}, v{vT} row_ror:8 row_mask:0xf bank_mask:0x3")
        a.e(f"v_add_f32_dpp v{vT+2}, v{vT+2}, v{vT+2} row_ror:8 row_mask:0xf bank_mask:0x3")
        a.e(f"v_add_f32_dpp v{vT}, v{vT+1}, v{vT+1} row_ror:8 row_mask:0xf bank_mask:0xc")
        a.e(f"v_add_f32_dpp v{vT+2}, v{vT+3}, v{vT+3} row_ror:8 row_mask:0xf bank_mask:0xc")
        a.e("s_nop 1")
        gq = grp % 4
        a.e(f"v_add_f32_dpp v{vR2+gq}, v{vT}, v{vT} row_half_mirror row_mask:0xf bank_mask:0x5")
        a.e(f"v_add_f32_dpp v{vR2+gq}, v{vT+2}, v{vT+2} row_half_mirror row_mask:0xf bank_mask:0xa")
        if gq == 3:
            blk = grp // 4
            a.e("s_nop 1")
            for k in range(4):
                a.e(f"v_add_f32_dpp v{vR2+k}, v{vR2+k}, v{vR2+k} quad_perm:[2,3,0,1] {DPPF}")
            a.e(f"v_cndmask_b32 v{vR2}, v{vR2}, v{vR2+1}, {sr(sM1,2)}")
            a.e(f"v_cndmask_b32 v{vR2+2}, v{vR2+2}, v{vR2+3}, {sr(sM1,2)}")
            a.e("s_nop 1")
            a.e(f"v_add_f32_dpp v{vR2}, v{vR2}, v{vR2} quad_perm:[1,0,3,2] {DPPF}")
            a.e(f"v_add_f32_dpp v{vR2+2}, v{vR2+2}, v{vR2+2} quad_perm:[1,0,3,2] {DPPF}")
            a.e(f"v_cndmask_b32 v{vS+blk}, v{vR2}, v{vR2+2}, {sr(sM0,2)}")

    a.c("softmax")
    vM = vU
    a.e(f"v_mov_b32 v{vM}, v{vS}")
    for k in range(1, NB):
        a.e(f"v_max_f32 v{vM}, v{vM}, v{vS+k}")
    for sh in (8, 4, 2, 1):
        a.e("s_nop 1")
        a.e(f"v_max_f32_dpp v{vM}, v{vM}, v{vM} row_ror:{sh} {DPPF}")
    a.e("s_nop 1")
    for k in range(4):
        a.e(f"v_readlane_b32 s{sT+k}, v{vM}, {16*k}")
    a.e("s_nop 1")
    a.e(f"v_mov_b32 v{vM}, s{sT}")
    for k in range(1, 4):
        a.e(f"v_max_f32 v{vM}, s{sT+k}, v{vM}")
    vMC = vU + 1
    vL = vU + 2
    a.e(f"v_mul_f32 v{vMC}, s{sCS}, v{vM}")
    for k in range(NB):
        a.e(f"v_fma_f32 v{vS+k}, v{vS+k}, s{sCS}, -v{vMC}")
    for k in range(NB):
        a.e(f"v_exp_f32 v{vS+k}, v{vS+k}")
    a.e("s_nop 0")
    for k in range(NB):
        a.e(f"v_cvt_pk_bf16_f32 v{vS+k}, v{vS+k}, v{vS+k}")
    for k in range(NB):
        a.e(f"v_and_b32 v{vT+k}, 0xffff0000, v{vS+k}")
    a.e(f"v_mov_b32 v{vL}, v{vT}")
    for k in range(1, NB):
        a.e(f"v_add_f32 v{vL}, v{vL}, v{vT+k}")
    for sh in (8, 4, 2, 1):
        a.e("s_nop 1")
        a.e(f"v_add_f32_dpp v{vL}, v{vL}, v{vL} row_ror:{sh} {DPPF}")
    a.e("s_nop 1")
    for k in range(4):
        a.e(f"v_readlane_b32 s{sT+k}, v{vL}, {16*k}")
    a.e("s_nop 1")
    a.e(f"v_mov_b32 v{vL}, s{sT}")
    for k in range(1, 4):
        a.e(f"v_add_f32 v{vL}, s{sT+k}, v{vL}")
    a.e(f"s_lshl_b32 s{sT}, s{sWAVE}, 3")
    a.e(f"v_mov_b32 v{vT0+2}, s{sT}")
    a.e(f"v_mov_b32 v{vU+4}, v{vMC}")
    a.e(f"v_mov_b32 v{vU+5}, v{vL}")
    a.e("s_mov_b64 exec, 1")
    a.e(f"ds_write_b64 v{vT0+2}, {vr(vU+4,2)} offset:{ML}")
    a.e("s_mov_b64 exec, -1")

    first = True
    for grp in range(NT // 4):
        i0 = NT + grp * 4
        blk = grp // 4
        a.c(f"V group {grp}")
        for t in range(4):
            tt = (grp % 4) * 4 + t
            onehot(vOH + 4 * t, vS + blk, bitrev4(tt))
        a.wait(("S", i0 + 3))
        a.e("s_nop 1")
        for t in range(4):
            buf = vBUF + ((i0 + t) % D) * 4
            cs = "0" if first else vr(vACC, 4)
            a.e(f"v_mfma_f32_16x16x32_bf16 {vr(vACC,4)}, {vr(vOH+4*t,4)}, {vr(buf,4)}, {cs}")
            first = False
        issue_stream(4)

    a.c("epilogue")
    a.e("s_nop 7")
    a.e("s_nop 1")
    a.e("s_mov_b32 exec_hi, 0")
    a.e(f"ds_write_b128 v{vT0+1}, {vr(vACC,4)} offset:{OP}")
    a.e("s_mov_b64 exec, -1")
    a.e("s_waitcnt lgkmcnt(0)")
    a.e("s_barrier")
    lg = int(math.log2(RG))
    a.e(f"v_lshrrev_b32 v{vT0+2}, {lg}, v{vC}")
    a.e(f"v_lshlrev_b32 v{vT0+3}, 4, v{vT0+2}")
    a.e(f"ds_read_b128 {vr(vOH,4)}, v{vT0+3} offset:{ML}")
    a.e(f"v_and_b32 v{vT0+3}, {RG-1}, v{vC}")
    a.e(f"v_lshl_add_u32 v{vT0+3}, v{vT0+3}, 2, v{vR}")
    a.e(f"s_mul_i32 s{sT}, s{sWAVE}, {RG*4}")
    a.e(f"v_add_u32 v{vT0+3}, s{sT}, v{vT0+3}")
    a.e(f"v_lshlrev_b32 v{vT0+3}, 2, v{vT0+3}")
    a.e(f"v_lshl_add_u32 v{vT0+3}, v{vT0+2}, 10, v{vT0+3}")
    a.e(f"ds_read_b32 v{vOH+4}, v{vT0+3} offset:{OP}")
    a.e(f"ds_read_b32 v{vOH+5}, v{vT0+3} offset:{OP+512}")
    a.e("s_waitcnt lgkmcnt(0)")
    rors = [RG << k for k in range(4 - lg)]
    vMM = vU
    a.e(f"v_max_f32 v{vMM}, v{vOH}, v{vOH+2}")
    for sh in rors:
        a.e("s_nop 1")
        a.e(f"v_max_f32_dpp v{vMM}, v{vMM}, v{vMM} row_ror:{sh} {DPPF}")
    a.e(f"v_sub_f32 v{vU+1}, v{vOH}, v{vMM}")
    a.e(f"v_sub_f32 v{vU+2}, v{vOH+2}, v{vMM}")
    a.e(f"v_exp_f32 v{vU+1}, v{vU+1}")
    a.e(f"v_exp_f32 v{vU+2}, v{vU+2}")
    a.e("s_nop 0")
    a.e(f"v_mul_f32 v{vU+3}, v{vU+1}, v{vOH+1}")
    a.e(f"v_fmac_f32 v{vU+3}, v{vU+2}, v{vOH+3}")
    a.e(f"v_mul_f32 v{vU+4}, v{vU+1}, v{vOH+4}")
    a.e(f"v_fmac_f32 v{vU+4}, v{vU+2}, v{vOH+5}")
    for sh in rors:
        a.e("s_nop 1")
        a.e(f"v_add_f32_dpp v{vU+3}, v{vU+3}, v{vU+3} row_ror:{sh} {DPPF}")
        a.e(f"v_add_f32_dpp v{vU+4}, v{vU+4}, v{vU+4} row_ror:{sh} {DPPF}")
    a.e(f"v_rcp_f32 v{vU+5}, v{vU+3}")
    a.e(f"v_log_f32 v{vU+6}, v{vU+3}")
    a.e("s_nop 0")
    a.e(f"v_mul_f32 v{vU+4}, v{vU+4}, v{vU+5}")
    a.e(f"v_add_f32 v{vU+6}, v{vU+6}, v{vMM}")
    a.e(f"v_cvt_pk_bf16_f32 v{vU+4}, v{vU+4}, v{vU+4}")
    a.e("s_nop 1")
    for rg in range(RG):
        onehot(vOH + 4 * rg, vU + 4, rg)
    a.wait([("wo", i) for i in range(NWO)])
    a.e("s_nop 1")
    for rg in range(RG):
        for seg in range(5):
            cs = "0" if rg == 0 else vr(vY + 4 * seg, 4)
            a.e(f"v_mfma_f32_16x16x32_bf16 {vr(vY+4*seg,4)}, {vr(vOH+4*rg,4)}, {vr(vW+4*(rg*5+seg),4)}, {cs}")
    a.e(f"s_mul_i32 s{sT}, s{sWAVE}, 2560")
    a.e(f"v_add_u32 v{vT0+2}, s{sT}, v{vT0}")
    a.e("s_nop 7")
    a.e("s_nop 1")
    a.e("s_mov_b32 exec_hi, 0")
    for seg in range(5):
        a.e(f"ds_write_b128 v{vT0+2}, {vr(vY+4*seg,4)} offset:{YP+seg*512}")
    a.e("s_mov_b64 exec, -1")
    a.e("s_waitcnt lgkmcnt(0)")
    a.e("s_barrier")
    a.e(f"s_cmp_ge_u32 s{sWAVE}, 5")
    a.e("s_cbranch_scc1 L_main_end")
    a.e(f"s_lshl_b32 s{sT}, s{sWAVE}, 9")
    a.e(f"v_lshlrev_b32 v{vT0+2}, 2, v{vLANE}")
    a.e(f"v_add_u32 v{vT0+2}, s{sT}, v{vT0+2}")
    a.e(f"v_add_u32 v{vT0+3}, {YP}, v{vT0+2}")
    for w in range(W):
        a.e(f"ds_read2st64_b32 {vr(vBUF+2*w,2)}, v{vT0+3} offset0:{w*10} offset1:{w*10+1}")
    a.e("s_waitcnt lgkmcnt(0)")
    for w in range(1, W):
        a.e(f"v_add_f32 v{vBUF}, v{vBUF}, v{vBUF+2*w}")
        a.e(f"v_add_f32 v{vBUF+1}, v{vBUF+1}, v{vBUF+2*w+1}")
    a.e(f"s_mul_i32 s{sT}, s{sIDX}, 2560")
    a.e(f"buffer_store_dword v{vBUF}, v{vT0+2}, {sr(sWS,4)}, s{sT} offen")
    a.e(f"buffer_store_dword v{vBUF+1}, v{vT0+2}, {sr(sWS,4)}, s{sT} offen offset:256")
    a.e(f"s_cmp_lg_u32 s{sWAVE}, 0")
    a.e("s_cbranch_scc1 L_main_end")
    a.e(f"s_lshl_b32 s{sT}, s{sIDX}, 2")
    a.e(f"s_add_u32 s{sT}, s{sT}, {1024*1024}")
    a.e(f"v_mov_b32 v{vT0+2}, 0")
    a.e("s_mov_b64 exec, 1")
    a.e(f"buffer_store_dword v{vU+6}, v{vT0+2}, {sr(sWS,4)}, s{sT} offen")
    a.label("L_main_end")
    a.e("s_endpgm")

    a.raw(".globl red_kernel")
    a.raw(".p2align 8")
    a.raw(".type red_kernel,@function")
    a.label("red_kernel")
    a.e("s_cmp_ge_u32 s2, 40")
    a.e("s_cbranch_scc1 L_red_end")
    a.e("s_load_dwordx2 s[4:5], s[0:1], 80")
    a.e("s_load_dwordx2 s[6:7], s[0:1], 96")
    a.e("s_mul_i32 s3, s2, 26")
    a.e("s_lshr_b32 s3, s3, 8")
    a.e("s_mul_i32 s16, s3, 10")
    a.e("s_sub_u32 s16, s2, s16")
    a.e("v_and_b32 v1, 63, v0")
    a.e("v_lshrrev_b32 v2, 6, v0")
    a.e("s_nop 0")
    a.e("v_readfirstlane_b32 s17, v2")
    a.e("s_waitcnt lgkmcnt(0)")
    a.e("s_mov_b32 s8, s6")
    a.e("s_mov_b32 s9, s7")
    a.e(f"s_mov_b32 s10, {2*1024*1024}")
    a.e("s_mov_b32 s11, 0x20000")
    a.e("s_mov_b32 s12, s4")
    a.e("s_mov_b32 s13, s5")
    a.e("s_mov_b32 s14, 5120")
    a.e("s_mov_b32 s15, 0x20000")
    a.e("s_lshl_b32 s18, s3, 8")
    a.e(f"s_add_u32 s18, s18, {1024*1024}")
    a.e("v_lshlrev_b32 v3, 2, v1")
    a.e("buffer_load_dword v4, v3, s[8:11], s18 offen")
    a.e("s_lshl_b32 s19, s3, 6")
    a.e("s_lshl_b32 s20, s17, 4")
    a.e("s_add_u32 s19, s19, s20")
    a.e("s_mul_i32 s19, s19, 2560")
    a.e("s_lshl_b32 s20, s16, 8")
    a.e("s_add_u32 s19, s19, s20")
    for k in range(16):
        a.e(f"buffer_load_dword v{16+k}, v3, s[8:11], s19 offen")
        a.e("s_add_u32 s19, s19, 2560")
    a.e("s_waitcnt vmcnt(16)")
    a.e(f"v_mov_b32_dpp v5, v4 quad_perm:[1,0,3,2] {DPPF}")
    a.e("v_max_f32 v6, v4, v5")
    a.e("v_sub_f32 v7, v4, v6")
    a.e("v_sub_f32 v8, v5, v6")
    a.e("v_exp_f32 v7, v7")
    a.e("v_exp_f32 v8, v8")
    a.e("s_nop 0")
    a.e("v_add_f32 v8, v7, v8")
    a.e("v_rcp_f32 v8, v8")
    a.e("s_nop 0")
    a.e("v_mul_f32 v7, v7, v8")
    a.e("s_lshl_b32 s20, s17, 4")
    a.e("s_nop 1")
    for k in range(16):
        a.e(f"s_add_u32 s21, s20, {k}")
        a.e("s_nop 3")
        a.e(f"v_readlane_b32 s{24+k}, v7, s21")
    a.e("s_waitcnt vmcnt(0)")
    a.e("v_mul_f32 v9, s24, v16")
    for k in range(1, 16):
        a.e(f"v_fmac_f32 v9, s{24+k}, v{16+k}")
    a.e("v_lshlrev_b32 v10, 2, v0")
    a.e("ds_write_b32 v10, v9")
    a.e("s_waitcnt lgkmcnt(0)")
    a.e("s_barrier")
    a.e("s_cmp_lg_u32 s17, 0")
    a.e("s_cbranch_scc1 L_red_end")
    a.e("ds_read2st64_b32 v[12:13], v10 offset0:0 offset1:1")
    a.e("ds_read2st64_b32 v[14:15], v10 offset0:2 offset1:3")
    a.e("s_waitcnt lgkmcnt(0)")
    a.e("v_add_f32 v12, v12, v13")
    a.e("v_add_f32 v14, v14, v15")
    a.e("v_add_f32 v12, v12, v14")
    a.e("v_cvt_pk_bf16_f32 v12, v12, v12")
    a.e("s_and_b32 s20, s3, 1")
    a.e("s_mul_i32 s20, s20, 2560")
    a.e("s_lshr_b32 s21, s3, 1")
    a.e("s_mul_i32 s21, s21, 1280")
    a.e("s_add_u32 s20, s20, s21")
    a.e("s_lshl_b32 s21, s16, 7")
    a.e("s_add_u32 s20, s20, s21")
    a.e("v_lshlrev_b32 v3, 1, v1")
    a.e("buffer_store_short v12, v3, s[12:15], s20 offen")
    a.label("L_red_end")
    a.e("s_endpgm")

    def kd(name, vg, sg):
        acc = (vg + 3) // 4 * 4
        return f""".amdhsa_kernel {name}
  .amdhsa_next_free_vgpr {vg}
  .amdhsa_next_free_sgpr {sg}
  .amdhsa_accum_offset {acc}
  .amdhsa_group_segment_fixed_size 0
  .amdhsa_kernarg_size 104
  .amdhsa_user_sgpr_count 2
  .amdhsa_user_sgpr_kernarg_segment_ptr 1
  .amdhsa_system_sgpr_workgroup_id_x 1
  .amdhsa_float_denorm_mode_32 3
.end_amdhsa_kernel
"""
    a.raw('.section .rodata,"a"')
    a.raw(".p2align 6")
    a.raw(kd("main_kernel", VGPRS, SGPRS))
    a.raw(".p2align 6")
    a.raw(kd("red_kernel", 32, 48))
    return a.text()


if __name__ == "__main__":
    import argparse
    ap = argparse.ArgumentParser()
    ap.add_argument("-o", default=f"cdna_kernels/{NAME}.s")
    ap.add_argument("--W", type=int, default=8)
    ap.add_argument("--D", type=int, default=16)
    ap.add_argument("--interleave", type=int, default=0)
    ap.add_argument("--kv", default="")
    ap.add_argument("--w", default="")
    args = ap.parse_args()
    kv = (" " + args.kv) if args.kv else ""
    w = (" " + args.w) if args.w else ""
    open(args.o, "w").write(gen(args.W, args.D, bool(args.interleave), kv, w))
```

```python
import sys, math, struct, argparse

NAME = "concat_heads__gqa_block_cached__gqa_block_cached__decode"
KNAME = NAME + "_kernel"


def f32bits(x):
    return struct.unpack("<I", struct.pack("<f", x))[0]


def bitrev4(t):
    return ((t & 1) << 3) | ((t & 2) << 1) | ((t & 4) >> 1) | ((t & 8) >> 3)


class Asm:
    def __init__(self):
        self.lines = []
        self.vm = []
        self.nlabel = 0

    def e(self, s):
        self.lines.append("    " + s)

    def c(self, s):
        self.lines.append("    ; " + s)

    def label(self, s):
        self.lines.append(s + ":")

    def newlabel(self, base):
        self.nlabel += 1
        return f"L_{base}_{self.nlabel}"

    def raw(self, s):
        self.lines.append(s)

    def vmem(self, s, tag):
        self.e(s)
        self.vm.append(tag)
        assert len(self.vm) <= 58, "too many outstanding vmem ops"

    def mark(self, tag):
        self.vm.append(("mark", tag))

    def count_after(self, tag):
        idx = max(i for i, t in enumerate(self.vm) if t == tag)
        return sum(1 for t in self.vm[idx + 1:] if not (isinstance(t, tuple) and t[0] == "mark"))

    def wait(self, tags):
        if not isinstance(tags, (list, set)):
            tags = [tags]
        last = -1
        for i, t in enumerate(self.vm):
            if t in tags:
                last = i
        if last < 0:
            return
        n = sum(1 for t in self.vm[last + 1:] if not (isinstance(t, tuple) and t[0] == "mark"))
        self.e(f"s_waitcnt vmcnt({n})")
        self.vm = self.vm[last + 1:]

    def text(self):
        return "\n".join(self.lines) + "\n"


def vr(a, n=1):
    return f"v{a}" if n == 1 else f"v[{a}:{a+n-1}]"


def sr(a, n=1):
    return f"s{a}" if n == 1 else f"s[{a}:{a+n-1}]"


def gen(args):
    a = Asm()
    W = 8
    NP = args.NP
    DSS = args.D
    inst = args.inst
    hint = " nt"
    NG = 16
    NB = 4
    NWQ = 20
    RG = 4
    CSCALE = (128 ** -0.5) * math.log2(math.e)
    LR = args.lr

    QP = 0
    QF = QP + W * 512
    MX = QF + W * 256
    LS = MX + 64
    FF = LS + 64
    OP = MX + 256
    YP = OP + W * 512
    LDS_BYTES = YP + W * 2560

    WS_ACC = 0
    WS_LSE = 65536
    WS_ST = 4 * 1024 * 1024
    DBG_FLAG = 16
    DBG_ZERO = 80

    vTID, vLANE, vC, vR, vKOFF, vWQOFF, vWOOFF, vXOFF, vX0, vX1 = range(10)
    vT0 = 10
    vQ = 16
    vMASK = 20
    vACC = 24
    vS = 28
    vOH = 32
    vT = vOH
    vR2 = vOH + 4
    vU = 48
    vBUF = 56
    vW = vBUF + NP * 4
    vY = vBUF
    VGPRS = vW + NWQ * 4
    assert VGPRS <= 256, VGPRS
    vLSE = vX0
    vFLG = vX1
    vPAY = vXOFF
    vMC = vWQOFF

    sWG = 2
    sKA = 4
    sP = 8
    sOUT = 20
    sBLK, sH, sB, sSPLIT, sWAVE, sIDX = 26, 27, 28, 29, 30, 31
    sK, sV, sWQ, sWO, sX, sWS = 32, 36, 40, 44, 48, 52
    sOFF = 56
    sT = 57
    sM1, sM0 = 64, 66
    sCS = 68
    sGRP = 69
    sOK = 70
    sFB = 71
    sDBG = 72
    sO = 76
    sST = 80
    SGPRS = 80 if not inst else 100

    def stamp(k):
        if inst:
            a.e(f"s_memrealtime s[{sST+2*k}:{sST+2*k+1}]")

    DPPF = "row_mask:0xf bank_mask:0xf"

    a.raw(f"; @launch grid=(256,1,1) block=({W*64},1,1) lds={LDS_BYTES}")
    a.raw('.amdgcn_target "amdgcn-amd-amdhsa--gfx950"')
    a.raw(".text")
    a.raw(f".globl {KNAME}")
    a.raw(".p2align 8")
    a.raw(f".type {KNAME},@function")
    a.label(KNAME)
    a.e(f"s_cmp_ge_u32 s{sWG}, 256")
    a.e("s_cbranch_scc1 L_exit")
    stamp(0)
    a.e(f"s_and_b32 s{sT}, s{sWG}, 7")
    a.e(f"s_lshr_b32 s{sBLK}, s{sT}, 2")
    a.e(f"s_mul_i32 s{sT+3}, s{sBLK}, 40")
    a.e(f"s_add_u32 s{sKA}, s0, s{sT+3}")
    a.e(f"s_addc_u32 s{sKA+1}, s1, 0")
    a.e(f"s_load_dwordx8 {sr(sP,8)}, {sr(sKA,2)}, 0")
    a.e(f"s_load_dwordx2 {sr(sP+8,2)}, {sr(sKA,2)}, 32")
    a.e(f"s_load_dwordx4 {sr(sOUT,4)}, s[0:1], 80")
    a.e(f"s_load_dwordx2 {sr(sOUT+4,2)}, s[0:1], 96")
    a.e(f"s_lshr_b32 s{sT+1}, s{sWG}, 3")
    a.e(f"s_lshl_b32 s{sT}, s{sT}, 3")
    a.e(f"s_lshr_b32 s{sT+2}, s{sT+1}, 2")
    a.e(f"s_add_u32 s{sT}, s{sT}, s{sT+2}")
    a.e(f"s_and_b32 s{sH}, s{sT}, 31")
    a.e(f"s_lshr_b32 s{sB}, s{sT+1}, 1")
    a.e(f"s_and_b32 s{sB}, s{sB}, 1")
    a.e(f"s_and_b32 s{sSPLIT}, s{sT+1}, 1")
    a.e(f"v_and_b32 v{vLANE}, 63, v{vTID}")
    a.e(f"v_lshrrev_b32 v{vT0}, 6, v{vTID}")
    a.e(f"v_and_b32 v{vC}, 15, v{vTID}")
    a.e(f"v_readfirstlane_b32 s{sWAVE}, v{vT0}")
    a.e(f"v_lshrrev_b32 v{vR}, 4, v{vLANE}")
    a.e(f"s_lshl_b32 s{sGRP}, s{sBLK}, 1")
    a.e(f"s_add_u32 s{sGRP}, s{sGRP}, s{sB}")
    a.e(f"s_lshl_b32 s{sIDX}, s{sGRP}, 5")
    a.e(f"s_add_u32 s{sIDX}, s{sIDX}, s{sH}")
    a.e(f"s_lshl_b32 s{sIDX}, s{sIDX}, 1")
    a.e(f"s_add_u32 s{sIDX}, s{sIDX}, s{sSPLIT}")
    PT = [int(ch) for ch in args.pat]
    assert sorted(PT) == list(range(10))
    IB = [PT[0], PT[1], PT[5], PT[6], PT[7], PT[8]]
    WB = PT[2:5]
    SB = PT[9]
    a.e(f"v_lshlrev_b32 v{vKOFF}, 4, v{vLANE}")
    a.e(f"s_lshl_b32 s{sT}, s{sSPLIT}, {10+SB}")
    for k in range(3):
        a.e(f"s_bfe_u32 s{sT+1}, s{sWAVE}, 0x{(1<<16)|k:x}")
        a.e(f"s_lshl_b32 s{sT+1}, s{sT+1}, {10+WB[k]}")
        a.e(f"s_or_b32 s{sT}, s{sT}, s{sT+1}")
    a.e(f"v_add_u32 v{vKOFF}, s{sT}, v{vKOFF}")
    a.e(f"s_mul_i32 s{sT}, s{sWAVE}, {NWQ*4}")
    a.e(f"v_add_u32 v{vWQOFF}, s{sT}, v{vR}")
    a.e(f"v_lshlrev_b32 v{vWQOFF}, 13, v{vWQOFF}")
    a.e(f"v_lshl_add_u32 v{vWQOFF}, v{vC}, 4, v{vWQOFF}")
    a.e(f"v_lshl_add_u32 v{vXOFF}, v{vC}, 2, v{vR}")
    a.e(f"v_add_u32 v{vXOFF}, s{sT}, v{vXOFF}")
    a.e(f"v_lshlrev_b32 v{vXOFF}, 1, v{vXOFF}")
    a.e(f"s_mul_i32 s{sT}, s{sWAVE}, {RG*4}")
    a.e(f"v_add_u32 v{vWOOFF}, s{sT}, v{vR}")
    a.e(f"v_mul_u32_u24 v{vWOOFF}, 1280, v{vWOOFF}")
    a.e(f"v_lshl_add_u32 v{vWOOFF}, v{vC}, 4, v{vWOOFF}")
    a.e("s_waitcnt lgkmcnt(0)")
    stamp(1)
    a.e(f"s_mul_i32 s{sT}, s{sB}, 1280")
    a.e(f"s_add_u32 s{sX}, s{sP}, s{sT}")
    a.e(f"s_addc_u32 s{sX+1}, s{sP+1}, 0")
    a.e(f"s_mov_b32 s{sX+2}, 1280")
    a.e(f"s_mov_b32 s{sX+3}, 0x20000")
    a.e(f"s_lshl_b32 s{sT}, s{sH}, 8")
    a.e(f"s_add_u32 s{sWQ}, s{sP+6}, s{sT}")
    a.e(f"s_addc_u32 s{sWQ+1}, s{sP+7}, 0")
    a.e(f"s_sub_u32 s{sWQ+2}, {640*8192}, s{sT}")
    a.e(f"s_mov_b32 s{sWQ+3}, 0x20000")

    stream = [("Q", t) for t in range(NWQ)] + [("K", t) for t in range(NG * 4)] + [("V", t) for t in range(NG * 4)]
    st = {"issued": 0, "consumed": 0, "soff": None}

    def set_soff(v):
        if v == 0:
            return "0"
        if st["soff"] != v:
            a.e(f"s_mov_b32 s{sOFF}, {v}")
            st["soff"] = v
        return f"s{sOFF}"

    def slot(i):
        return vBUF + (i % NP) * 4

    def issue_one():
        i = st["issued"]
        kind, t = stream[i]
        buf = slot(i)
        if kind == "Q":
            sos = set_soff(t * 32768)
            a.vmem(f"buffer_load_dwordx4 {vr(buf,4)}, v{vWQOFF}, {sr(sWQ,4)}, {sos} offen{hint}", ("S", i))
        else:
            srd = sK if kind == "K" else sV
            off = sum(((t >> k) & 1) << (10 + IB[k]) for k in range(6))
            imm = off % 4096
            sos = set_soff(off - imm)
            immS = f" offset:{imm}" if imm else ""
            a.vmem(f"buffer_load_dwordx4 {vr(buf,4)}, v{vKOFF}, {sr(srd,4)}, {sos} offen{immS}{hint}", ("S", i))
        st["issued"] = i + 1

    def top_up(limit):
        limit = min(limit, NP)
        while st["issued"] < len(stream) and st["issued"] - st["consumed"] < limit:
            issue_one()

    a.vmem(f"buffer_load_ushort v{vX0}, v{vXOFF}, {sr(sX,4)}, 0 offen", "x")
    a.vmem(f"buffer_load_ushort v{vX1}, v{vXOFF}, {sr(sX,4)}, 0 offen offset:128", "x")
    top_up(NWQ)
    a.e(f"s_bfe_u32 s{sT}, s{sIDX}, 0x60001")
    a.e(f"s_lshl_b32 s{sT}, s{sT}, 20")
    a.e(f"s_add_u32 s{sK}, s{sP+2}, s{sT}")
    a.e(f"s_addc_u32 s{sK+1}, s{sP+3}, 0")
    a.e(f"s_mov_b32 s{sK+2}, {1024*1024}")
    a.e(f"s_mov_b32 s{sK+3}, 0x20000")
    a.e(f"s_add_u32 s{sV}, s{sP+4}, s{sT}")
    a.e(f"s_addc_u32 s{sV+1}, s{sP+5}, 0")
    a.e(f"s_mov_b32 s{sV+2}, {1024*1024}")
    a.e(f"s_mov_b32 s{sV+3}, 0x20000")
    a.e(f"s_mul_i32 s{sT}, s{sH}, {128*1280}")
    a.e(f"s_add_u32 s{sWO}, s{sP+8}, s{sT}")
    a.e(f"s_addc_u32 s{sWO+1}, s{sP+9}, 0")
    a.e(f"s_mov_b32 s{sWO+2}, {128*1280}")
    a.e(f"s_mov_b32 s{sWO+3}, 0x20000")
    a.e(f"s_mov_b32 s{sWS}, s{sOUT+4}")
    a.e(f"s_mov_b32 s{sWS+1}, s{sOUT+5}")
    a.e(f"s_mov_b32 s{sWS+2}, {8*1024*1024}")
    a.e(f"s_mov_b32 s{sWS+3}, 0x20000")
    a.e(f"s_mov_b32 s{sDBG}, s{sOUT+2}")
    a.e(f"s_mov_b32 s{sDBG+1}, s{sOUT+3}")
    a.e(f"s_mov_b32 s{sDBG+2}, 256")
    a.e(f"s_mov_b32 s{sDBG+3}, 0x20000")
    a.e(f"s_mov_b32 s{sO}, s{sOUT}")
    a.e(f"s_mov_b32 s{sO+1}, s{sOUT+1}")
    a.e(f"s_mov_b32 s{sO+2}, 5120")
    a.e(f"s_mov_b32 s{sO+3}, 0x20000")
    if args.hbar:
        a.e("s_barrier")

    wo_state = {"n": 0}

    def issue_wo(n):
        for _ in range(n):
            k = wo_state["n"]
            if k >= 20:
                return
            rg, seg = divmod(k, 5)
            sos = set_soff(rg * 5120)
            immS = f" offset:{seg*256}" if seg else ""
            a.vmem(f"buffer_load_dwordx4 {vr(vW+4*k,4)}, v{vWOOFF}, {sr(sWO,4)}, {sos} offen{immS}{hint}", ("wo", k))
            wo_state["n"] = k + 1

    issue_wo(args.wo0)
    top_up(NWQ + args.K0)
    lz = a.newlabel("nozero")
    a.e(f"s_and_b32 s{sT}, s{sIDX}, 63")
    a.e(f"s_cmp_lg_u32 s{sT}, 0")
    a.e(f"s_cbranch_scc1 {lz}")
    a.e(f"s_cmp_lg_u32 s{sWAVE}, 0")
    a.e(f"s_cbranch_scc1 {lz}")
    for k in range(4):
        a.e(f"v_mov_b32 v{vU+k}, 0")
    a.e(f"v_lshlrev_b32 v{vU+4}, 4, v{vLANE}")
    a.e(f"s_mul_i32 s{sT}, s{sGRP}, 2560")
    a.e(f"buffer_store_dwordx4 {vr(vU,4)}, v{vU+4}, {sr(sWS,4)}, s{sT} offen offset:{WS_ACC} sc1")
    a.e(f"buffer_store_dwordx4 {vr(vU,4)}, v{vU+4}, {sr(sWS,4)}, s{sT} offen offset:{WS_ACC+1024} sc1")
    a.e("s_mov_b32 exec_hi, 0")
    a.e(f"buffer_store_dwordx4 {vr(vU,4)}, v{vU+4}, {sr(sWS,4)}, s{sT} offen offset:{WS_ACC+2048} sc1")
    a.e("s_mov_b64 exec, -1")
    a.label(lz)
    a.e(f"v_and_b32 v{vT0}, 1, v{vC}")
    a.e(f"v_lshlrev_b32 v{vT0}, 4, v{vT0}")
    a.e(f"v_mov_b32 v{vT0+1}, 0xffff")
    a.e(f"v_lshlrev_b32 v{vT0+1}, v{vT0}, v{vT0+1}")
    a.e(f"v_lshrrev_b32 v{vT0+2}, 1, v{vC}")
    for j in range(4):
        a.e(f"v_cmp_eq_u32 vcc, {j}, v{vT0+2}")
        a.e("s_nop 1")
        a.e(f"v_cndmask_b32 v{vMASK+j}, 0, v{vT0+1}, vcc")
    a.e(f"s_mov_b32 s{sM1}, 0xcccccccc")
    a.e(f"s_mov_b32 s{sM1+1}, 0xcccccccc")
    a.e(f"s_mov_b32 s{sM0}, 0xaaaaaaaa")
    a.e(f"s_mov_b32 s{sM0+1}, 0xaaaaaaaa")
    a.e(f"s_mov_b32 s{sCS}, 0x{f32bits(CSCALE):08x}")
    a.e(f"v_lshlrev_b32 v{vT0}, 5, v{vC}")
    a.e(f"v_lshl_add_u32 v{vT0}, v{vR}, 4, v{vT0}")
    a.e(f"s_lshl_b32 s{sT}, s{sWAVE}, 9")
    a.e(f"v_add_u32 v{vT0+1}, s{sT}, v{vT0}")

    def onehot(dst, src, lane):
        for j in range(4):
            a.e(f"v_and_b32_dpp v{dst+j}, v{src}, v{vMASK+j} row_newbcast:{lane} {DPPF}")

    a.wait("x")
    a.e(f"v_lshl_or_b32 v{vX0}, v{vX0}, 16, v{vX0}")
    a.e(f"v_lshl_or_b32 v{vX1}, v{vX1}, 16, v{vX1}")
    a.e("s_nop 1")
    for g0 in range(0, NWQ, 4):
        for t in range(4):
            i = g0 + t
            onehot(vOH + 4 * t, vX0 if i < 16 else vX1, i % 16)
        a.wait(("S", g0 + 3))
        a.e("s_nop 1")
        for t in range(4):
            i = g0 + t
            cs = "0" if i == 0 else vr(vACC, 4)
            a.e(f"v_mfma_f32_16x16x32_bf16 {vr(vACC,4)}, {vr(vOH+4*t,4)}, {vr(slot(i),4)}, {cs}")
        st["consumed"] += 4
    stamp(2)
    a.e("s_nop 7")
    a.e("s_mov_b32 exec_hi, 0")
    a.e(f"ds_write_b128 v{vT0+1}, {vr(vACC,4)} offset:{QP}")
    a.e("s_mov_b64 exec, -1")
    issue_wo(args.wo1)
    top_up(args.K1)
    a.e(f"v_lshlrev_b32 v{vT0+2}, 3, v{vLANE}")
    a.e("s_waitcnt lgkmcnt(0)")
    a.e("s_barrier")
    for w in range(W):
        a.e(f"ds_read_b64 {vr(vOH+2*w,2)}, v{vT0+2} offset:{QP+w*512}")
    a.e(f"s_lshl_b32 s{sT}, s{sWAVE}, 8")
    a.e(f"v_lshlrev_b32 v{vT0+2}, 2, v{vLANE}")
    a.e(f"v_add_u32 v{vT0+2}, s{sT}, v{vT0+2}")
    a.e(f"v_lshlrev_b32 v{vT0+3}, 4, v{vC}")
    a.e(f"v_add_u32 v{vT0+3}, s{sT}, v{vT0+3}")
    a.e("s_waitcnt lgkmcnt(0)")
    for k in range(1, W):
        a.e(f"v_add_f32 v{vOH}, v{vOH}, v{vOH+2*k}")
        a.e(f"v_add_f32 v{vOH+1}, v{vOH+1}, v{vOH+2*k+1}")
    a.e(f"v_cvt_pk_bf16_f32 v{vU}, v{vOH}, v{vOH+1}")
    a.e(f"ds_write_b32 v{vT0+2}, v{vU} offset:{QF}")
    a.e("s_waitcnt lgkmcnt(0)")
    a.e(f"ds_read_b128 {vr(vQ,4)}, v{vT0+3} offset:{QF}")
    a.e("s_waitcnt lgkmcnt(0)")
    stamp(3)

    for grp in range(NG):
        i0 = NWQ + grp * 4
        a.c(f"K group {grp}")
        a.wait(("S", i0 + 3))
        for j in range(4):
            for t in range(4):
                cs = "0" if j == 0 else f"v{vT+t}"
                a.e(f"v_dot2_f32_bf16 v{vT+t}, v{slot(i0+t)+j}, v{vQ+j}, {cs}")
        st["consumed"] += 4
        issue_wo(args.wog)
        top_up(DSS)
        a.e("s_nop 2")
        a.e(f"v_add_f32_dpp v{vT}, v{vT}, v{vT} row_ror:8 row_mask:0xf bank_mask:0x3")
        a.e(f"v_add_f32_dpp v{vT+2}, v{vT+2}, v{vT+2} row_ror:8 row_mask:0xf bank_mask:0x3")
        a.e(f"v_add_f32_dpp v{vT}, v{vT+1}, v{vT+1} row_ror:8 row_mask:0xf bank_mask:0xc")
        a.e(f"v_add_f32_dpp v{vT+2}, v{vT+3}, v{vT+3} row_ror:8 row_mask:0xf bank_mask:0xc")
        a.e("s_nop 1")
        gq = grp % 4
        a.e(f"v_add_f32_dpp v{vR2+gq}, v{vT}, v{vT} row_half_mirror row_mask:0xf bank_mask:0x5")
        a.e(f"v_add_f32_dpp v{vR2+gq}, v{vT+2}, v{vT+2} row_half_mirror row_mask:0xf bank_mask:0xa")
        if gq == 3:
            blk = grp // 4
            a.e("s_nop 1")
            for k in range(4):
                a.e(f"v_add_f32_dpp v{vR2+k}, v{vR2+k}, v{vR2+k} quad_perm:[2,3,0,1] {DPPF}")
            a.e(f"v_cndmask_b32 v{vR2}, v{vR2}, v{vR2+1}, {sr(sM1,2)}")
            a.e(f"v_cndmask_b32 v{vR2+2}, v{vR2+2}, v{vR2+3}, {sr(sM1,2)}")
            a.e("s_nop 1")
            a.e(f"v_add_f32_dpp v{vR2}, v{vR2}, v{vR2} quad_perm:[1,0,3,2] {DPPF}")
            a.e(f"v_add_f32_dpp v{vR2+2}, v{vR2+2}, v{vR2+2} quad_perm:[1,0,3,2] {DPPF}")
            a.e(f"v_cndmask_b32 v{vS+blk}, v{vR2}, v{vR2+2}, {sr(sM0,2)}")
        if args.bar and (grp + 1) % args.bar == 0 and grp != NG - 1:
            a.e("s_barrier")

    assert wo_state["n"] == 20
    a.c("softmax")
    stamp(4)
    vM = vU
    a.e(f"v_max_f32 v{vM}, v{vS}, v{vS+1}")
    a.e(f"v_max3_f32 v{vM}, v{vM}, v{vS+2}, v{vS+3}")
    for sh in (8, 4, 2, 1):
        a.e("s_nop 1")
        a.e(f"v_max_f32_dpp v{vM}, v{vM}, v{vM} row_ror:{sh} {DPPF}")
    a.e(f"s_lshl_b32 s{sT}, s{sWAVE}, 4")
    a.e(f"v_lshl_add_u32 v{vT0+2}, v{vR}, 2, s{sT}")
    a.e("s_mov_b32 exec_lo, 0x00010001")
    a.e("s_mov_b32 exec_hi, 0x00010001")
    a.e(f"ds_write_b32 v{vT0+2}, v{vM} offset:{MX}")
    a.e("s_mov_b64 exec, -1")
    a.e(f"v_lshlrev_b32 v{vT0+3}, 3, v{vC}")
    a.e("s_waitcnt lgkmcnt(0)")
    a.e("s_barrier")
    a.e(f"ds_read_b64 {vr(vU+2,2)}, v{vT0+3} offset:{MX}")
    a.e("s_waitcnt lgkmcnt(0)")
    a.e(f"v_max_f32 v{vM}, v{vU+2}, v{vU+3}")
    for sh in (8, 4, 2, 1):
        a.e("s_nop 1")
        a.e(f"v_max_f32_dpp v{vM}, v{vM}, v{vM} row_ror:{sh} {DPPF}")
    vL = vU + 2
    a.e(f"v_mul_f32 v{vMC}, s{sCS}, v{vM}")
    for k in range(NB):
        a.e(f"v_fma_f32 v{vS+k}, v{vS+k}, s{sCS}, -v{vMC}")
    for k in range(NB):
        a.e(f"v_exp_f32 v{vS+k}, v{vS+k}")
    a.e("s_nop 0")
    for k in range(NB):
        a.e(f"v_cvt_pk_bf16_f32 v{vS+k}, v{vS+k}, v{vS+k}")
    for k in range(NB):
        a.e(f"v_and_b32 v{vT+k}, 0xffff0000, v{vS+k}")
    a.e(f"v_add_f32 v{vL}, v{vT}, v{vT+1}")
    a.e(f"v_add_f32 v{vT+2}, v{vT+2}, v{vT+3}")
    a.e(f"v_add_f32 v{vL}, v{vL}, v{vT+2}")
    for sh in (8, 4, 2, 1):
        a.e("s_nop 1")
        a.e(f"v_add_f32_dpp v{vL}, v{vL}, v{vL} row_ror:{sh} {DPPF}")
    a.e("s_mov_b32 exec_lo, 0x00010001")
    a.e("s_mov_b32 exec_hi, 0x00010001")
    a.e(f"ds_write_b32 v{vT0+2}, v{vL} offset:{MX+128}")
    a.e("s_mov_b64 exec, -1")
    a.e("s_waitcnt lgkmcnt(0)")
    a.e("s_barrier")

    def wave0(fn, nm):
        l = a.newlabel(nm)
        a.e(f"s_cmp_lg_u32 s{sWAVE}, 0")
        a.e(f"s_cbranch_scc1 {l}")
        fn()
        a.label(l)

    def publish_lse():
        a.e(f"ds_read_b64 {vr(vU+2,2)}, v{vT0+3} offset:{MX+128}")
        a.e("s_waitcnt lgkmcnt(0)")
        a.e(f"v_add_f32 v{vL}, v{vU+2}, v{vU+3}")
        for sh in (8, 4, 2, 1):
            a.e("s_nop 1")
            a.e(f"v_add_f32_dpp v{vL}, v{vL}, v{vL} row_ror:{sh} {DPPF}")
        a.e(f"v_log_f32 v{vL}, v{vL}")
        a.e("s_nop 0")
        a.e(f"v_add_f32 v{vLSE}, v{vL}, v{vMC}")
        a.e(f"s_lshl_b32 s{sT}, s{sIDX}, 7")
        a.e(f"s_add_u32 s{sT}, s{sT}, {WS_LSE}")
        a.e(f"v_mov_b32 v{vU+4}, 0")
        a.e("s_mov_b64 exec, 1")
        a.e(f"buffer_store_dword v{vLSE}, v{vU+4}, {sr(sWS,4)}, s{sT} offen sc1")
        a.e("s_mov_b64 exec, -1")
    wave0(publish_lse, "pub")
    a.mark("lse_store")

    def set_flags():
        a.e(f"s_waitcnt vmcnt({a.count_after(('mark','lse_store')) if ('mark','lse_store') in a.vm else 63})")
        a.e(f"s_and_b32 s{sT}, s{sIDX}, 31")
        a.e(f"s_lshl_b32 s{sT+1}, 1, s{sT}")
        a.e(f"v_mov_b32 v{vU+4}, s{sT+1}")
        a.e(f"s_lshr_b32 s{sT}, s{sIDX}, 5")
        a.e(f"s_lshl_b32 s{sT}, s{sT}, 2")
        a.e(f"v_mov_b32 v{vU+5}, 0")
        a.e("s_mov_b64 exec, 1")
        a.e(f"buffer_atomic_or v{vU+4}, v{vU+5}, {sr(sDBG,4)}, s{sT} offen offset:{DBG_FLAG}")
        l = a.newlabel("nz")
        a.e(f"s_and_b32 s{sT}, s{sIDX}, 63")
        a.e(f"s_cmp_lg_u32 s{sT}, 0")
        a.e(f"s_cbranch_scc1 {l}")
        a.e(f"s_lshl_b32 s{sT}, s{sGRP}, 2")
        a.e(f"v_mov_b32 v{vU+6}, 1")
        a.e(f"buffer_atomic_or v{vU+6}, v{vU+5}, {sr(sDBG,4)}, s{sT} offen offset:{DBG_ZERO}")
        a.label(l)
        a.e("s_mov_b64 exec, -1")

    def flag_addr():
        a.e(f"s_lshr_b32 s{sT}, s{sIDX}, 5")
        a.e(f"s_lshl_b32 s{sT}, s{sT}, 2")
        a.e(f"s_add_u32 s{sT}, s{sT}, {DBG_FLAG}")
        a.e(f"s_lshl_b32 s{sT+1}, s{sGRP}, 2")
        a.e(f"s_add_u32 s{sT+1}, s{sT+1}, {DBG_ZERO}")
        a.e(f"v_mov_b32 v{vU+4}, s{sT+1}")
        a.e(f"v_writelane_b32 v{vU+4}, s{sT}, 0")

    def load_flags():
        flag_addr()
        a.e("s_mov_b64 exec, 3")
        a.e(f"buffer_load_dword v{vFLG}, v{vU+4}, {sr(sDBG,4)}, 0 offen sc1")
        a.e("s_mov_b64 exec, -1")

    def test_flags():
        a.e(f"v_readlane_b32 s{sT}, v{vFLG}, 0")
        a.e(f"v_readlane_b32 s{sT+1}, v{vFLG}, 1")
        a.e(f"s_xor_b32 s{sT+2}, s{sIDX}, 1")
        a.e(f"s_and_b32 s{sT+2}, s{sT+2}, 31")
        a.e("s_nop 1")
        a.e(f"s_lshr_b32 s{sT}, s{sT}, s{sT+2}")
        a.e(f"s_and_b32 s{sT}, s{sT}, s{sT+1}")
        a.e(f"s_and_b32 s{sOK}, s{sT}, 1")

    def load_payload():
        a.e(f"s_xor_b32 s{sT}, s{sIDX}, 1")
        a.e(f"s_lshl_b32 s{sT}, s{sT}, 7")
        a.e(f"s_add_u32 s{sT}, s{sT}, {WS_LSE}")
        a.e(f"v_mov_b32 v{vU+4}, 0")
        a.e(f"buffer_load_dword v{vPAY}, v{vU+4}, {sr(sWS,4)}, s{sT} offen sc1")

    def check_flags():
        n = a.count_after(("mark", "flag_load")) if ("mark", "flag_load") in a.vm else None
        if n is not None:
            a.e(f"s_waitcnt vmcnt({n})")
        test_flags()
        l = a.newlabel("nopay")
        a.e(f"s_cmp_eq_u32 s{sOK}, 0")
        a.e(f"s_cbranch_scc1 {l}")
        load_payload()
        a.label(l)

    def finish_factor():
        a.e("s_waitcnt vmcnt(0)")
        lok = a.newlabel("ok")
        lsp = a.newlabel("spin")
        a.e(f"s_cmp_lg_u32 s{sOK}, 0")
        a.e(f"s_cbranch_scc1 {lok}")
        a.e(f"s_mov_b32 s{sT+4}, 0")
        a.label(lsp)
        load_flags()
        a.e("s_waitcnt vmcnt(0)")
        test_flags()
        a.e(f"s_add_u32 s{sT+4}, s{sT+4}, 1")
        a.e(f"s_lshr_b32 s{sT+5}, s{sT+4}, 18")
        a.e(f"s_or_b32 s{sT+5}, s{sT+5}, s{sOK}")
        a.e(f"s_cmp_eq_u32 s{sT+5}, 0")
        a.e(f"s_cbranch_scc1 {lsp}")
        load_payload()
        a.e("s_waitcnt vmcnt(0)")
        a.label(lok)
        a.e(f"v_max_f32 v{vU}, v{vLSE}, v{vPAY}")
        a.e(f"v_sub_f32 v{vU+1}, v{vLSE}, v{vU}")
        a.e(f"v_sub_f32 v{vU+2}, v{vPAY}, v{vU}")
        a.e(f"v_sub_f32 v{vU+3}, v{vMC}, v{vU}")
        a.e(f"v_exp_f32 v{vU+1}, v{vU+1}")
        a.e(f"v_exp_f32 v{vU+2}, v{vU+2}")
        a.e(f"v_exp_f32 v{vU+3}, v{vU+3}")
        a.e(f"v_add_f32 v{vU+1}, v{vU+1}, v{vU+2}")
        a.e(f"v_rcp_f32 v{vU+1}, v{vU+1}")
        a.e(f"v_mov_b32 v{vU+4}, 0")
        a.e(f"v_mul_f32 v{vU+1}, v{vU+1}, v{vU+3}")
        a.e("s_mov_b64 exec, 1")
        a.e(f"ds_write_b32 v{vU+4}, v{vU+1} offset:{QP}")
        a.e("s_mov_b64 exec, -1")

    for grp in range(NG):
        i0 = NWQ + NG * 4 + grp * 4
        blk = grp // 4
        a.c(f"V group {grp}")
        for t in range(4):
            onehot(vOH + 4 * t, vS + blk, bitrev4((grp % 4) * 4 + t))
        a.wait(("S", i0 + 3))
        a.e("s_nop 1")
        for t in range(4):
            cs = "0" if (grp == 0 and t == 0) else vr(vACC, 4)
            a.e(f"v_mfma_f32_16x16x32_bf16 {vr(vACC,4)}, {vr(vOH+4*t,4)}, {vr(slot(i0+t),4)}, {cs}")
        st["consumed"] += 4
        top_up(DSS)
        if grp == args.g_set:
            wave0(set_flags, "setf")
        if grp == args.g_load:
            wave0(load_flags, "ldf")
            a.mark("flag_load")
        if grp == args.g_check:
            wave0(check_flags, "chk")
        if args.bar and (grp + 1) % args.bar == 0 and grp != NG - 1:
            a.e("s_barrier")

    a.c("epilogue")
    stamp(5)
    wave0(finish_factor, "fin")
    a.e("s_nop 7")
    a.e("s_mov_b32 exec_hi, 0")
    a.e(f"ds_write_b128 v{vT0+1}, {vr(vACC,4)} offset:{OP}")
    a.e("s_mov_b64 exec, -1")
    a.e(f"v_lshrrev_b32 v{vT0+2}, 2, v{vC}")
    a.e(f"v_and_b32 v{vT0+3}, 3, v{vC}")
    a.e(f"v_lshl_add_u32 v{vT0+3}, v{vT0+3}, 2, v{vR}")
    a.e(f"s_lshl_b32 s{sT}, s{sWAVE}, 4")
    a.e(f"v_add_u32 v{vT0+3}, s{sT}, v{vT0+3}")
    a.e(f"v_lshlrev_b32 v{vT0+3}, 2, v{vT0+3}")
    a.e(f"v_lshl_add_u32 v{vT0+3}, v{vT0+2}, 10, v{vT0+3}")
    a.e(f"v_mov_b32 v{vU+4}, 0")
    a.e("s_waitcnt lgkmcnt(0)")
    a.e("s_barrier")
    a.e(f"ds_read2st64_b32 {vr(vU,2)}, v{vT0+3} offset0:{OP//256} offset1:{OP//256+2}")
    a.e(f"ds_read_b32 v{vU+2}, v{vU+4} offset:{QP}")
    assert OP % 256 == 0
    a.e(f"s_mul_i32 s{sT}, s{sWAVE}, 2560")
    a.e(f"v_add_u32 v{vT0+2}, s{sT}, v{vT0}")
    a.e("s_waitcnt lgkmcnt(0)")
    a.e(f"v_add_f32 v{vU}, v{vU}, v{vU+1}")
    for sh in (4, 8):
        a.e("s_nop 1")
        a.e(f"v_add_f32_dpp v{vU}, v{vU}, v{vU} row_ror:{sh} {DPPF}")
    a.e(f"v_mul_f32 v{vU}, v{vU}, v{vU+2}")
    a.e(f"v_cvt_pk_bf16_f32 v{vU}, v{vU}, v{vU}")
    a.e("s_nop 1")
    for rg in range(RG):
        onehot(vOH + 4 * rg, vU, rg)
    a.wait([("wo", i) for i in range(20)])
    a.e("s_nop 1")
    for rg in range(RG):
        for seg in range(5):
            cs = "0" if rg == 0 else vr(vY + 4 * seg, 4)
            a.e(f"v_mfma_f32_16x16x32_bf16 {vr(vY+4*seg,4)}, {vr(vOH+4*rg,4)}, {vr(vW+4*(rg*5+seg),4)}, {cs}")
    stamp(6)
    a.e("s_mov_b32 exec_hi, 0")
    a.e("s_nop 3")
    for seg in range(5):
        a.e(f"ds_write_b128 v{vT0+2}, {vr(vY+4*seg,4)} offset:{YP+seg*512}")
    a.e("s_mov_b64 exec, -1")
    a.e(f"s_lshl_b32 s{sT}, s{sWAVE}, 9")
    a.e(f"v_lshlrev_b32 v{vT0+2}, 2, v{vLANE}")
    a.e(f"v_add_u32 v{vT0+2}, s{sT}, v{vT0+2}")
    a.e("s_waitcnt lgkmcnt(0)")
    a.e("s_barrier")
    a.e(f"s_cmp_ge_u32 s{sWAVE}, 5")
    a.e("s_cbranch_scc1 L_end")
    assert YP % 256 == 0
    for w in range(W):
        a.e(f"ds_read2st64_b32 {vr(vW+2*w,2)}, v{vT0+2} offset0:{YP//256+w*10} offset1:{YP//256+w*10+1}")
    a.e(f"s_mul_i32 s{sT}, s{sGRP}, 2560")
    a.e("s_waitcnt lgkmcnt(0)")
    for w in range(1, W):
        a.e(f"v_add_f32 v{vW}, v{vW}, v{vW+2*w}")
        a.e(f"v_add_f32 v{vW+1}, v{vW+1}, v{vW+2*w+1}")
    a.e(f"buffer_atomic_add_f32 v{vW}, v{vT0+2}, {sr(sWS,4)}, s{sT} offen offset:{WS_ACC}")
    a.e(f"buffer_atomic_add_f32 v{vW+1}, v{vT0+2}, {sr(sWS,4)}, s{sT} offen offset:{WS_ACC+256}")
    a.e("s_waitcnt vmcnt(0)")
    a.e("s_barrier")
    a.e(f"s_cmp_lg_u32 s{sWAVE}, 0")
    a.e("s_cbranch_scc1 L_end")
    a.e(f"s_lshl_b32 s{sT+1}, s{sGRP}, 6")
    a.e(f"v_mov_b32 v{vU}, 1")
    a.e(f"v_mov_b32 v{vU+1}, 0")
    a.e("s_mov_b64 exec, 1")
    a.e(f"buffer_atomic_add v{vU}, v{vU+1}, {sr(sDBG,4)}, s{sT+1} offen sc0")
    a.e("s_mov_b64 exec, -1")
    a.e("s_waitcnt vmcnt(0)")
    a.e(f"v_readfirstlane_b32 s{sT+1}, v{vU}")
    a.e("s_nop 3")
    a.e(f"s_cmp_lg_u32 s{sT+1}, 63")
    a.e("s_cbranch_scc1 L_end")
    a.e(f"v_lshlrev_b32 v{vU}, 3, v{vLANE}")
    for k in range(5):
        a.e(f"v_mov_b32 v{vW+2*k}, 0")
        a.e(f"v_mov_b32 v{vW+2*k+1}, 0")
    for k in range(5):
        a.e(f"buffer_atomic_or_x2 {vr(vW+2*k,2)}, v{vU}, {sr(sWS,4)}, s{sT} offen offset:{WS_ACC+512*k} sc0")
    a.e(f"s_mul_i32 s{sT+1}, s{sB}, 2560")
    a.e(f"s_mul_i32 s{sT+2}, s{sBLK}, 1280")
    a.e(f"s_add_u32 s{sT+1}, s{sT+1}, s{sT+2}")
    a.e(f"v_lshlrev_b32 v{vU+1}, 2, v{vLANE}")
    for k in range(5):
        a.e("s_waitcnt vmcnt(4)")
        a.e(f"v_cvt_pk_bf16_f32 v{vW+16+k}, v{vW+2*k}, v{vW+2*k+1}")
        a.e(f"buffer_store_dword v{vW+16+k}, v{vU+1}, {sr(sO,4)}, s{sT+1} offen offset:{256*k}")
    a.label("L_end")
    if inst:
        a.e("s_mov_b64 exec, -1")
        stamp(7)
        a.e(f"s_getreg_b32 s{sT+1}, hwreg(HW_REG_XCC_ID)")
        a.e(f"s_getreg_b32 s{sT+2}, hwreg(HW_REG_HW_ID)")
        a.e("s_waitcnt lgkmcnt(0)")
        a.e(f"v_mov_b32 v{vU}, 0")
        for k in range(8):
            a.e(f"v_writelane_b32 v{vU}, s{sST+2*k}, {k}")
        a.e(f"v_writelane_b32 v{vU}, s{sT+1}, 14")
        a.e(f"v_writelane_b32 v{vU}, s{sT+2}, 15")
        a.e(f"s_mul_i32 s{sT}, s{sWG}, {W}")
        a.e(f"s_add_u32 s{sT}, s{sT}, s{sWAVE}")
        a.e(f"s_lshl_b32 s{sT}, s{sT}, 6")
        a.e(f"s_add_u32 s{sT}, s{sT}, {WS_ST}")
        a.e(f"v_lshlrev_b32 v{vU+1}, 2, v{vLANE}")
        a.e("s_mov_b64 exec, 0xffff")
        a.e(f"buffer_store_dword v{vU}, v{vU+1}, {sr(sWS,4)}, s{sT} offen")
    a.label("L_exit")
    a.e("s_endpgm")

    acc = (VGPRS + 3) // 4 * 4
    a.raw('.section .rodata,"a"')
    a.raw(".p2align 6")
    a.raw(f""".amdhsa_kernel {KNAME}
  .amdhsa_next_free_vgpr {VGPRS}
  .amdhsa_next_free_sgpr {SGPRS}
  .amdhsa_accum_offset {acc}
  .amdhsa_group_segment_fixed_size 0
  .amdhsa_kernarg_size 104
  .amdhsa_user_sgpr_count 2
  .amdhsa_user_sgpr_kernarg_segment_ptr 1
  .amdhsa_system_sgpr_workgroup_id_x 1
  .amdhsa_float_denorm_mode_32 3
.end_amdhsa_kernel
""")
    return a.text()


if __name__ == "__main__":
    ap = argparse.ArgumentParser()
    ap.add_argument("-o", default=f"cdna_kernels/{NAME}.s")
    ap.add_argument("--NP", type=int, default=28)
    ap.add_argument("--D", type=int, default=12)
    ap.add_argument("--lr", type=int, default=2)
    ap.add_argument("--pat", default="0134657892")
    ap.add_argument("--bar", type=int, default=4)
    ap.add_argument("--hbar", type=int, default=1)
    ap.add_argument("--wo0", type=int, default=0)
    ap.add_argument("--wo1", type=int, default=0)
    ap.add_argument("--wog", type=int, default=2)
    ap.add_argument("--K0", type=int, default=8)
    ap.add_argument("--K1", type=int, default=16)
    ap.add_argument("--g_set", type=int, default=3)
    ap.add_argument("--g_load", type=int, default=10)
    ap.add_argument("--g_check", type=int, default=13)
    ap.add_argument("--inst", type=int, default=0)
    args = ap.parse_args()
    open(args.o, "w").write(gen(args))
```

```python
import sys, math, struct, argparse

NAME = "concat_heads__gqa_block_cached__gqa_block_cached__decode"
KNAME = NAME + "_kernel"


def f32bits(x):
    return struct.unpack("<I", struct.pack("<f", x))[0]


def bitrev4(t):
    return ((t & 1) << 3) | ((t & 2) << 1) | ((t & 4) >> 1) | ((t & 8) >> 3)


class Asm:
    def __init__(self):
        self.lines = []
        self.vm = []
        self.nlabel = 0

    def e(self, s):
        self.lines.append("    " + s)

    def c(self, s):
        self.lines.append("    ; " + s)

    def label(self, s):
        self.lines.append(s + ":")

    def newlabel(self, base):
        self.nlabel += 1
        return f"L_{base}_{self.nlabel}"

    def raw(self, s):
        self.lines.append(s)

    def vmem(self, s, tag):
        self.e(s)
        self.vm.append(tag)
        assert len(self.vm) <= 58, "too many outstanding vmem ops"

    def mark(self, tag):
        self.vm.append(("mark", tag))

    def count_after(self, tag):
        idx = max(i for i, t in enumerate(self.vm) if t == tag)
        return sum(1 for t in self.vm[idx + 1:] if not (isinstance(t, tuple) and t[0] == "mark"))

    def wait(self, tags):
        if not isinstance(tags, (list, set)):
            tags = [tags]
        last = -1
        for i, t in enumerate(self.vm):
            if t in tags:
                last = i
        if last < 0:
            return
        n = sum(1 for t in self.vm[last + 1:] if not (isinstance(t, tuple) and t[0] == "mark"))
        self.e(f"s_waitcnt vmcnt({n})")
        self.vm = self.vm[last + 1:]

    def text(self):
        return "\n".join(self.lines) + "\n"


def vr(a, n=1):
    return f"v{a}" if n == 1 else f"v[{a}:{a+n-1}]"


def sr(a, n=1):
    return f"s{a}" if n == 1 else f"s[{a}:{a+n-1}]"


def gen(args):
    a = Asm()
    W = 8
    NP = args.NP
    DSS = args.D
    inst = args.inst
    hint = " nt"
    NG = 16
    NB = 4
    NWQ = 20
    RG = 4
    CSCALE = (128 ** -0.5) * math.log2(math.e)
    LR = args.lr

    QP = 0
    QF = QP + W * 512
    MX = QF + W * 256
    LS = MX + 64
    FF = LS + 64
    OP = MX + 256
    YP = OP + W * 512
    LDS_BYTES = YP + W * 2560

    WS_ACC = 0
    WS_LSE = 65536
    WS_ST = 4 * 1024 * 1024
    DBG_FLAG = 16
    DBG_ZERO = 80

    vTID, vLANE, vC, vR, vKOFF, vWQOFF, vWOOFF, vXOFF, vX0, vX1 = range(10)
    vT0 = 10
    vQ = 16
    vMASK = 20
    vACC = 24
    vS = 28
    vOH = 32
    vT = vOH
    vR2 = vOH + 4
    vU = 48
    vBUF = 56
    vW = vBUF + NP * 4
    vY = vBUF
    VGPRS = vW + NWQ * 4
    assert VGPRS <= 256, VGPRS
    vLSE = vX0
    vFLG = vX1
    vPAY = vXOFF
    vMC = vWQOFF

    sWG = 2
    sKA = 4
    sP = 8
    sOUT = 20
    sBLK, sH, sB, sSPLIT, sWAVE, sIDX = 26, 27, 28, 29, 30, 31
    sK, sV, sWQ, sWO, sX, sWS = 32, 36, 40, 44, 48, 52
    sOFF = 56
    sT = 57
    sM1, sM0 = 64, 66
    sCS = 68
    sGRP = 69
    sOK = 70
    sFB = 71
    sDBG = 72
    sO = 76
    sST = 80
    SGPRS = 80 if not inst else 100

    def stamp(k):
        if inst:
            a.e(f"s_memrealtime s[{sST+2*k}:{sST+2*k+1}]")

    DPPF = "row_mask:0xf bank_mask:0xf"

    a.raw(f"; @launch grid=(256,1,1) block=({W*64},1,1) lds={LDS_BYTES}")
    a.raw('.amdgcn_target "amdgcn-amd-amdhsa--gfx950"')
    a.raw(".text")
    a.raw(f".globl {KNAME}")
    a.raw(".p2align 8")
    a.raw(f".type {KNAME},@function")
    a.label(KNAME)
    a.e(f"s_cmp_ge_u32 s{sWG}, 256")
    a.e("s_cbranch_scc1 L_exit")
    stamp(0)
    a.e(f"s_and_b32 s{sT}, s{sWG}, 7")
    a.e(f"s_lshr_b32 s{sBLK}, s{sT}, 2")
    a.e(f"s_mul_i32 s{sT+3}, s{sBLK}, 40")
    a.e(f"s_add_u32 s{sKA}, s0, s{sT+3}")
    a.e(f"s_addc_u32 s{sKA+1}, s1, 0")
    a.e(f"s_load_dwordx8 {sr(sP,8)}, {sr(sKA,2)}, 0")
    a.e(f"s_load_dwordx2 {sr(sP+8,2)}, {sr(sKA,2)}, 32")
    a.e(f"s_load_dwordx4 {sr(sOUT,4)}, s[0:1], 80")
    a.e(f"s_load_dwordx2 {sr(sOUT+4,2)}, s[0:1], 96")
    a.e(f"s_lshr_b32 s{sT+1}, s{sWG}, 3")
    a.e(f"s_lshl_b32 s{sT}, s{sT}, 3")
    a.e(f"s_lshr_b32 s{sT+2}, s{sT+1}, 2")
    a.e(f"s_add_u32 s{sT}, s{sT}, s{sT+2}")
    a.e(f"s_and_b32 s{sH}, s{sT}, 31")
    a.e(f"s_lshr_b32 s{sB}, s{sT+1}, 1")
    a.e(f"s_and_b32 s{sB}, s{sB}, 1")
    a.e(f"s_and_b32 s{sSPLIT}, s{sT+1}, 1")
    a.e(f"v_and_b32 v{vLANE}, 63, v{vTID}")
    a.e(f"v_lshrrev_b32 v{vT0}, 6, v{vTID}")
    a.e(f"v_and_b32 v{vC}, 15, v{vTID}")
    a.e(f"v_readfirstlane_b32 s{sWAVE}, v{vT0}")
    a.e(f"v_lshrrev_b32 v{vR}, 4, v{vLANE}")
    a.e(f"s_lshl_b32 s{sGRP}, s{sBLK}, 1")
    a.e(f"s_add_u32 s{sGRP}, s{sGRP}, s{sB}")
    a.e(f"s_lshl_b32 s{sIDX}, s{sGRP}, 5")
    a.e(f"s_add_u32 s{sIDX}, s{sIDX}, s{sH}")
    a.e(f"s_lshl_b32 s{sIDX}, s{sIDX}, 1")
    a.e(f"s_add_u32 s{sIDX}, s{sIDX}, s{sSPLIT}")
    PT = [int(ch) for ch in args.pat]
    assert sorted(PT) == list(range(10))
    IB = [PT[0], PT[1], PT[5], PT[6], PT[7], PT[8]]
    WB = PT[2:5]
    SB = PT[9]
    a.e(f"v_lshlrev_b32 v{vKOFF}, 4, v{vLANE}")
    a.e(f"s_lshl_b32 s{sT}, s{sSPLIT}, {10+SB}")
    for k in range(3):
        a.e(f"s_bfe_u32 s{sT+1}, s{sWAVE}, 0x{(1<<16)|k:x}")
        a.e(f"s_lshl_b32 s{sT+1}, s{sT+1}, {10+WB[k]}")
        a.e(f"s_or_b32 s{sT}, s{sT}, s{sT+1}")
    a.e(f"v_add_u32 v{vKOFF}, s{sT}, v{vKOFF}")
    a.e(f"s_mul_i32 s{sT}, s{sWAVE}, {NWQ*4}")
    a.e(f"v_add_u32 v{vWQOFF}, s{sT}, v{vR}")
    a.e(f"v_lshlrev_b32 v{vWQOFF}, 13, v{vWQOFF}")
    a.e(f"v_lshl_add_u32 v{vWQOFF}, v{vC}, 4, v{vWQOFF}")
    a.e(f"v_lshl_add_u32 v{vXOFF}, v{vC}, 2, v{vR}")
    a.e(f"v_add_u32 v{vXOFF}, s{sT}, v{vXOFF}")
    a.e(f"v_lshlrev_b32 v{vXOFF}, 1, v{vXOFF}")
    a.e(f"s_mul_i32 s{sT}, s{sWAVE}, {RG*4}")
    a.e(f"v_add_u32 v{vWOOFF}, s{sT}, v{vR}")
    a.e(f"v_mul_u32_u24 v{vWOOFF}, 1280, v{vWOOFF}")
    a.e(f"v_lshl_add_u32 v{vWOOFF}, v{vC}, 4, v{vWOOFF}")
    a.e("s_waitcnt lgkmcnt(0)")
    stamp(1)
    a.e(f"s_mul_i32 s{sT}, s{sB}, 1280")
    a.e(f"s_add_u32 s{sX}, s{sP}, s{sT}")
    a.e(f"s_addc_u32 s{sX+1}, s{sP+1}, 0")
    a.e(f"s_mov_b32 s{sX+2}, 1280")
    a.e(f"s_mov_b32 s{sX+3}, 0x20000")
    a.e(f"s_lshl_b32 s{sT}, s{sH}, 8")
    a.e(f"s_add_u32 s{sWQ}, s{sP+6}, s{sT}")
    a.e(f"s_addc_u32 s{sWQ+1}, s{sP+7}, 0")
    a.e(f"s_sub_u32 s{sWQ+2}, {640*8192}, s{sT}")
    a.e(f"s_mov_b32 s{sWQ+3}, 0x20000")

    stream = [("Q", t) for t in range(NWQ)] + [("K", t) for t in range(NG * 4)] + [("V", t) for t in range(NG * 4)]
    st = {"issued": 0, "consumed": 0, "soff": None}

    def set_soff(v):
        if v == 0:
            return "0"
        if st["soff"] != v:
            a.e(f"s_mov_b32 s{sOFF}, {v}")
            st["soff"] = v
        return f"s{sOFF}"

    def slot(i):
        return vBUF + (i % NP) * 4

    def issue_one():
        i = st["issued"]
        kind, t = stream[i]
        buf = slot(i)
        if kind == "Q":
            sos = set_soff(t * 32768)
            a.vmem(f"buffer_load_dwordx4 {vr(buf,4)}, v{vWQOFF}, {sr(sWQ,4)}, {sos} offen{hint}", ("S", i))
        else:
            srd = sK if kind == "K" else sV
            off = sum(((t >> k) & 1) << (10 + IB[k]) for k in range(6))
            imm = off % 4096
            sos = set_soff(off - imm)
            immS = f" offset:{imm}" if imm else ""
            a.vmem(f"buffer_load_dwordx4 {vr(buf,4)}, v{vKOFF}, {sr(srd,4)}, {sos} offen{immS}{hint}", ("S", i))
        st["issued"] = i + 1

    def top_up(limit):
        limit = min(limit, NP)
        while st["issued"] < len(stream) and st["issued"] - st["consumed"] < limit:
            issue_one()

    a.vmem(f"buffer_load_ushort v{vX0}, v{vXOFF}, {sr(sX,4)}, 0 offen", "x")
    a.vmem(f"buffer_load_ushort v{vX1}, v{vXOFF}, {sr(sX,4)}, 0 offen offset:128", "x")
    top_up(NWQ)
    a.e(f"s_bfe_u32 s{sT}, s{sIDX}, 0x60001")
    a.e(f"s_lshl_b32 s{sT}, s{sT}, 20")
    a.e(f"s_add_u32 s{sK}, s{sP+2}, s{sT}")
    a.e(f"s_addc_u32 s{sK+1}, s{sP+3}, 0")
    a.e(f"s_mov_b32 s{sK+2}, {1024*1024}")
    a.e(f"s_mov_b32 s{sK+3}, 0x20000")
    a.e(f"s_add_u32 s{sV}, s{sP+4}, s{sT}")
    a.e(f"s_addc_u32 s{sV+1}, s{sP+5}, 0")
    a.e(f"s_mov_b32 s{sV+2}, {1024*1024}")
    a.e(f"s_mov_b32 s{sV+3}, 0x20000")
    a.e(f"s_mul_i32 s{sT}, s{sH}, {128*1280}")
    a.e(f"s_add_u32 s{sWO}, s{sP+8}, s{sT}")
    a.e(f"s_addc_u32 s{sWO+1}, s{sP+9}, 0")
    a.e(f"s_mov_b32 s{sWO+2}, {128*1280}")
    a.e(f"s_mov_b32 s{sWO+3}, 0x20000")
    a.e(f"s_mov_b32 s{sWS}, s{sOUT+4}")
    a.e(f"s_mov_b32 s{sWS+1}, s{sOUT+5}")
    a.e(f"s_mov_b32 s{sWS+2}, {8*1024*1024}")
    a.e(f"s_mov_b32 s{sWS+3}, 0x20000")
    a.e(f"s_mov_b32 s{sDBG}, s{sOUT+2}")
    a.e(f"s_mov_b32 s{sDBG+1}, s{sOUT+3}")
    a.e(f"s_mov_b32 s{sDBG+2}, 256")
    a.e(f"s_mov_b32 s{sDBG+3}, 0x20000")
    a.e(f"s_mov_b32 s{sO}, s{sOUT}")
    a.e(f"s_mov_b32 s{sO+1}, s{sOUT+1}")
    a.e(f"s_mov_b32 s{sO+2}, 5120")
    a.e(f"s_mov_b32 s{sO+3}, 0x20000")
    if args.hbar:
        a.e("s_barrier")

    wo_state = {"n": 0}

    def issue_wo(n):
        for _ in range(n):
            k = wo_state["n"]
            if k >= 20:
                return
            rg, seg = divmod(k, 5)
            sos = set_soff(rg * 5120)
            immS = f" offset:{seg*256}" if seg else ""
            a.vmem(f"buffer_load_dwordx4 {vr(vW+4*k,4)}, v{vWOOFF}, {sr(sWO,4)}, {sos} offen{immS}{hint}", ("wo", k))
            wo_state["n"] = k + 1

    issue_wo(args.wo0)
    top_up(NWQ + args.K0)
    lz = a.newlabel("nozero")
    a.e(f"s_and_b32 s{sT}, s{sIDX}, 63")
    a.e(f"s_cmp_lg_u32 s{sT}, 0")
    a.e(f"s_cbranch_scc1 {lz}")
    a.e(f"s_cmp_lg_u32 s{sWAVE}, 0")
    a.e(f"s_cbranch_scc1 {lz}")
    for k in range(4):
        a.e(f"v_mov_b32 v{vU+k}, 0")
    a.e(f"v_lshlrev_b32 v{vU+4}, 4, v{vLANE}")
    a.e(f"s_mul_i32 s{sT}, s{sGRP}, 2560")
    a.e(f"buffer_store_dwordx4 {vr(vU,4)}, v{vU+4}, {sr(sWS,4)}, s{sT} offen offset:{WS_ACC} sc1")
    a.e(f"buffer_store_dwordx4 {vr(vU,4)}, v{vU+4}, {sr(sWS,4)}, s{sT} offen offset:{WS_ACC+1024} sc1")
    a.e("s_mov_b32 exec_hi, 0")
    a.e(f"buffer_store_dwordx4 {vr(vU,4)}, v{vU+4}, {sr(sWS,4)}, s{sT} offen offset:{WS_ACC+2048} sc1")
    a.e("s_mov_b64 exec, -1")
    a.label(lz)
    a.e(f"v_and_b32 v{vT0}, 1, v{vC}")
    a.e(f"v_lshlrev_b32 v{vT0}, 4, v{vT0}")
    a.e(f"v_mov_b32 v{vT0+1}, 0xffff")
    a.e(f"v_lshlrev_b32 v{vT0+1}, v{vT0}, v{vT0+1}")
    a.e(f"v_lshrrev_b32 v{vT0+2}, 1, v{vC}")
    for j in range(4):
        a.e(f"v_cmp_eq_u32 vcc, {j}, v{vT0+2}")
        a.e("s_nop 1")
        a.e(f"v_cndmask_b32 v{vMASK+j}, 0, v{vT0+1}, vcc")
    a.e(f"s_mov_b32 s{sM1}, 0xcccccccc")
    a.e(f"s_mov_b32 s{sM1+1}, 0xcccccccc")
    a.e(f"s_mov_b32 s{sM0}, 0xaaaaaaaa")
    a.e(f"s_mov_b32 s{sM0+1}, 0xaaaaaaaa")
    a.e(f"s_mov_b32 s{sCS}, 0x{f32bits(CSCALE):08x}")
    a.e(f"v_lshlrev_b32 v{vT0}, 5, v{vC}")
    a.e(f"v_lshl_add_u32 v{vT0}, v{vR}, 4, v{vT0}")
    a.e(f"s_lshl_b32 s{sT}, s{sWAVE}, 9")
    a.e(f"v_add_u32 v{vT0+1}, s{sT}, v{vT0}")

    def onehot(dst, src, lane):
        for j in range(4):
            a.e(f"v_and_b32_dpp v{dst+j}, v{src}, v{vMASK+j} row_newbcast:{lane} {DPPF}")

    a.wait("x")
    a.e(f"v_lshl_or_b32 v{vX0}, v{vX0}, 16, v{vX0}")
    a.e(f"v_lshl_or_b32 v{vX1}, v{vX1}, 16, v{vX1}")
    a.e("s_nop 1")
    for g0 in range(0, NWQ, 4):
        for t in range(4):
            i = g0 + t
            onehot(vOH + 4 * t, vX0 if i < 16 else vX1, i % 16)
        a.wait(("S", g0 + 3))
        a.e("s_nop 1")
        for t in range(4):
            i = g0 + t
            cs = "0" if i == 0 else vr(vACC, 4)
            a.e(f"v_mfma_f32_16x16x32_bf16 {vr(vACC,4)}, {vr(vOH+4*t,4)}, {vr(slot(i),4)}, {cs}")
        st["consumed"] += 4
    stamp(2)
    a.e("s_nop 7")
    a.e("s_mov_b32 exec_hi, 0")
    a.e(f"ds_write_b128 v{vT0+1}, {vr(vACC,4)} offset:{QP}")
    a.e("s_mov_b64 exec, -1")
    issue_wo(args.wo1)
    top_up(args.K1)
    a.e(f"v_lshlrev_b32 v{vT0+2}, 3, v{vLANE}")
    a.e("s_waitcnt lgkmcnt(0)")
    a.e("s_barrier")
    for w in range(W):
        a.e(f"ds_read_b64 {vr(vOH+2*w,2)}, v{vT0+2} offset:{QP+w*512}")
    a.e(f"s_lshl_b32 s{sT}, s{sWAVE}, 8")
    a.e(f"v_lshlrev_b32 v{vT0+2}, 2, v{vLANE}")
    a.e(f"v_add_u32 v{vT0+2}, s{sT}, v{vT0+2}")
    a.e(f"v_lshlrev_b32 v{vT0+3}, 4, v{vC}")
    a.e(f"v_add_u32 v{vT0+3}, s{sT}, v{vT0+3}")
    a.e("s_waitcnt lgkmcnt(0)")
    for k in range(1, W):
        a.e(f"v_add_f32 v{vOH}, v{vOH}, v{vOH+2*k}")
        a.e(f"v_add_f32 v{vOH+1}, v{vOH+1}, v{vOH+2*k+1}")
    a.e(f"v_cvt_pk_bf16_f32 v{vU}, v{vOH}, v{vOH+1}")
    a.e(f"ds_write_b32 v{vT0+2}, v{vU} offset:{QF}")
    a.e("s_waitcnt lgkmcnt(0)")
    a.e(f"ds_read_b128 {vr(vQ,4)}, v{vT0+3} offset:{QF}")
    a.e("s_waitcnt lgkmcnt(0)")
    stamp(3)

    for grp in range(NG):
        i0 = NWQ + grp * 4
        a.c(f"K group {grp}")
        a.wait(("S", i0 + 3))
        for j in range(4):
            for t in range(4):
                cs = "0" if j == 0 else f"v{vT+t}"
                a.e(f"v_dot2_f32_bf16 v{vT+t}, v{slot(i0+t)+j}, v{vQ+j}, {cs}")
        st["consumed"] += 4
        issue_wo(args.wog)
        top_up(DSS)
        a.e("s_nop 2")
        a.e(f"v_add_f32_dpp v{vT}, v{vT}, v{vT} row_ror:8 row_mask:0xf bank_mask:0x3")
        a.e(f"v_add_f32_dpp v{vT+2}, v{vT+2}, v{vT+2} row_ror:8 row_mask:0xf bank_mask:0x3")
        a.e(f"v_add_f32_dpp v{vT}, v{vT+1}, v{vT+1} row_ror:8 row_mask:0xf bank_mask:0xc")
        a.e(f"v_add_f32_dpp v{vT+2}, v{vT+3}, v{vT+3} row_ror:8 row_mask:0xf bank_mask:0xc")
        a.e("s_nop 1")
        gq = grp % 4
        a.e(f"v_add_f32_dpp v{vR2+gq}, v{vT}, v{vT} row_half_mirror row_mask:0xf bank_mask:0x5")
        a.e(f"v_add_f32_dpp v{vR2+gq}, v{vT+2}, v{vT+2} row_half_mirror row_mask:0xf bank_mask:0xa")
        if gq == 3:
            blk = grp // 4
            a.e("s_nop 1")
            for k in range(4):
                a.e(f"v_add_f32_dpp v{vR2+k}, v{vR2+k}, v{vR2+k} quad_perm:[2,3,0,1] {DPPF}")
            a.e(f"v_cndmask_b32 v{vR2}, v{vR2}, v{vR2+1}, {sr(sM1,2)}")
            a.e(f"v_cndmask_b32 v{vR2+2}, v{vR2+2}, v{vR2+3}, {sr(sM1,2)}")
            a.e("s_nop 1")
            a.e(f"v_add_f32_dpp v{vR2}, v{vR2}, v{vR2} quad_perm:[1,0,3,2] {DPPF}")
            a.e(f"v_add_f32_dpp v{vR2+2}, v{vR2+2}, v{vR2+2} quad_perm:[1,0,3,2] {DPPF}")
            a.e(f"v_cndmask_b32 v{vS+blk}, v{vR2}, v{vR2+2}, {sr(sM0,2)}")
        if args.bar and (grp + 1) % args.bar == 0 and grp != NG - 1:
            a.e("s_barrier")

    assert wo_state["n"] == 20
    a.c("softmax")
    stamp(4)
    vM = vU
    a.e(f"v_max_f32 v{vM}, v{vS}, v{vS+1}")
    a.e(f"v_max3_f32 v{vM}, v{vM}, v{vS+2}, v{vS+3}")
    for sh in (8, 4, 2, 1):
        a.e("s_nop 1")
        a.e(f"v_max_f32_dpp v{vM}, v{vM}, v{vM} row_ror:{sh} {DPPF}")
    a.e(f"s_lshl_b32 s{sT}, s{sWAVE}, 4")
    a.e(f"v_lshl_add_u32 v{vT0+2}, v{vR}, 2, s{sT}")
    a.e("s_mov_b32 exec_lo, 0x00010001")
    a.e("s_mov_b32 exec_hi, 0x00010001")
    a.e(f"ds_write_b32 v{vT0+2}, v{vM} offset:{MX}")
    a.e("s_mov_b64 exec, -1")
    a.e(f"v_lshlrev_b32 v{vT0+3}, 3, v{vC}")
    a.e("s_waitcnt lgkmcnt(0)")
    a.e("s_barrier")
    a.e(f"ds_read_b64 {vr(vU+2,2)}, v{vT0+3} offset:{MX}")
    a.e("s_waitcnt lgkmcnt(0)")
    a.e(f"v_max_f32 v{vM}, v{vU+2}, v{vU+3}")
    for sh in (8, 4, 2, 1):
        a.e("s_nop 1")
        a.e(f"v_max_f32_dpp v{vM}, v{vM}, v{vM} row_ror:{sh} {DPPF}")
    vL = vU + 2
    a.e(f"v_mul_f32 v{vMC}, s{sCS}, v{vM}")
    for k in range(NB):
        a.e(f"v_fma_f32 v{vS+k}, v{vS+k}, s{sCS}, -v{vMC}")
    for k in range(NB):
        a.e(f"v_exp_f32 v{vS+k}, v{vS+k}")
    a.e("s_nop 0")
    for k in range(NB):
        a.e(f"v_cvt_pk_bf16_f32 v{vS+k}, v{vS+k}, v{vS+k}")
    for k in range(NB):
        a.e(f"v_and_b32 v{vT+k}, 0xffff0000, v{vS+k}")
    a.e(f"v_add_f32 v{vL}, v{vT}, v{vT+1}")
    a.e(f"v_add_f32 v{vT+2}, v{vT+2}, v{vT+3}")
    a.e(f"v_add_f32 v{vL}, v{vL}, v{vT+2}")
    for sh in (8, 4, 2, 1):
        a.e("s_nop 1")
        a.e(f"v_add_f32_dpp v{vL}, v{vL}, v{vL} row_ror:{sh} {DPPF}")
    a.e("s_mov_b32 exec_lo, 0x00010001")
    a.e("s_mov_b32 exec_hi, 0x00010001")
    a.e(f"ds_write_b32 v{vT0+2}, v{vL} offset:{MX+128}")
    a.e("s_mov_b64 exec, -1")
    a.e("s_waitcnt lgkmcnt(0)")
    a.e("s_barrier")

    def wave0(fn, nm):
        l = a.newlabel(nm)
        a.e(f"s_cmp_lg_u32 s{sWAVE}, 0")
        a.e(f"s_cbranch_scc1 {l}")
        fn()
        a.label(l)

    def publish_lse():
        a.e(f"ds_read_b64 {vr(vU+2,2)}, v{vT0+3} offset:{MX+128}")
        a.e("s_waitcnt lgkmcnt(0)")
        a.e(f"v_add_f32 v{vL}, v{vU+2}, v{vU+3}")
        for sh in (8, 4, 2, 1):
            a.e("s_nop 1")
            a.e(f"v_add_f32_dpp v{vL}, v{vL}, v{vL} row_ror:{sh} {DPPF}")
        a.e(f"v_log_f32 v{vL}, v{vL}")
        a.e("s_nop 0")
        a.e(f"v_add_f32 v{vLSE}, v{vL}, v{vMC}")
        a.e(f"s_lshl_b32 s{sT}, s{sIDX}, 7")
        a.e(f"s_add_u32 s{sT}, s{sT}, {WS_LSE}")
        a.e(f"v_mov_b32 v{vU+4}, 0")
        a.e("s_mov_b64 exec, 1")
        a.e(f"buffer_store_dword v{vLSE}, v{vU+4}, {sr(sWS,4)}, s{sT} offen sc1")
        a.e("s_mov_b64 exec, -1")
    wave0(publish_lse, "pub")
    a.mark("lse_store")

    def set_flags():
        a.e(f"s_waitcnt vmcnt({a.count_after(('mark','lse_store')) if ('mark','lse_store') in a.vm else 63})")
        a.e(f"s_and_b32 s{sT}, s{sIDX}, 31")
        a.e(f"s_lshl_b32 s{sT+1}, 1, s{sT}")
        a.e(f"v_mov_b32 v{vU+4}, s{sT+1}")
        a.e(f"s_lshr_b32 s{sT}, s{sIDX}, 5")
        a.e(f"s_lshl_b32 s{sT}, s{sT}, 2")
        a.e(f"v_mov_b32 v{vU+5}, 0")
        a.e("s_mov_b64 exec, 1")
        a.e(f"buffer_atomic_or v{vU+4}, v{vU+5}, {sr(sDBG,4)}, s{sT} offen offset:{DBG_FLAG}")
        l = a.newlabel("nz")
        a.e(f"s_and_b32 s{sT}, s{sIDX}, 63")
        a.e(f"s_cmp_lg_u32 s{sT}, 0")
        a.e(f"s_cbranch_scc1 {l}")
        a.e(f"s_lshl_b32 s{sT}, s{sGRP}, 2")
        a.e(f"v_mov_b32 v{vU+6}, 1")
        a.e(f"buffer_atomic_or v{vU+6}, v{vU+5}, {sr(sDBG,4)}, s{sT} offen offset:{DBG_ZERO}")
        a.label(l)
        a.e("s_mov_b64 exec, -1")

    def flag_addr():
        a.e(f"s_lshr_b32 s{sT}, s{sIDX}, 5")
        a.e(f"s_lshl_b32 s{sT}, s{sT}, 2")
        a.e(f"s_add_u32 s{sT}, s{sT}, {DBG_FLAG}")
        a.e(f"s_lshl_b32 s{sT+1}, s{sGRP}, 2")
        a.e(f"s_add_u32 s{sT+1}, s{sT+1}, {DBG_ZERO}")
        a.e(f"v_mov_b32 v{vU+4}, s{sT+1}")
        a.e(f"v_writelane_b32 v{vU+4}, s{sT}, 0")

    def load_flags():
        flag_addr()
        a.e("s_mov_b64 exec, 3")
        a.e(f"buffer_load_dword v{vFLG}, v{vU+4}, {sr(sDBG,4)}, 0 offen sc1")
        a.e("s_mov_b64 exec, -1")

    def test_flags():
        a.e(f"v_readlane_b32 s{sT}, v{vFLG}, 0")
        a.e(f"v_readlane_b32 s{sT+1}, v{vFLG}, 1")
        a.e(f"s_xor_b32 s{sT+2}, s{sIDX}, 1")
        a.e(f"s_and_b32 s{sT+2}, s{sT+2}, 31")
        a.e("s_nop 1")
        a.e(f"s_lshr_b32 s{sT}, s{sT}, s{sT+2}")
        a.e(f"s_and_b32 s{sT}, s{sT}, s{sT+1}")
        a.e(f"s_and_b32 s{sOK}, s{sT}, 1")

    def load_payload():
        a.e(f"s_xor_b32 s{sT}, s{sIDX}, 1")
        a.e(f"s_lshl_b32 s{sT}, s{sT}, 7")
        a.e(f"s_add_u32 s{sT}, s{sT}, {WS_LSE}")
        a.e(f"v_mov_b32 v{vU+4}, 0")
        a.e(f"buffer_load_dword v{vPAY}, v{vU+4}, {sr(sWS,4)}, s{sT} offen sc1")

    def check_flags():
        n = a.count_after(("mark", "flag_load")) if ("mark", "flag_load") in a.vm else None
        if n is not None:
            a.e(f"s_waitcnt vmcnt({n})")
        test_flags()
        l = a.newlabel("nopay")
        a.e(f"s_cmp_eq_u32 s{sOK}, 0")
        a.e(f"s_cbranch_scc1 {l}")
        load_payload()
        a.label(l)

    def finish_factor():
        a.e("s_waitcnt vmcnt(0)")
        lok = a.newlabel("ok")
        lsp = a.newlabel("spin")
        a.e(f"s_cmp_lg_u32 s{sOK}, 0")
        a.e(f"s_cbranch_scc1 {lok}")
        a.e(f"s_mov_b32 s{sT+4}, 0")
        a.label(lsp)
        load_flags()
        a.e("s_waitcnt vmcnt(0)")
        test_flags()
        a.e(f"s_add_u32 s{sT+4}, s{sT+4}, 1")
        a.e(f"s_lshr_b32 s{sT+5}, s{sT+4}, 18")
        a.e(f"s_or_b32 s{sT+5}, s{sT+5}, s{sOK}")
        a.e(f"s_cmp_eq_u32 s{sT+5}, 0")
        a.e(f"s_cbranch_scc1 {lsp}")
        load_payload()
        a.e("s_waitcnt vmcnt(0)")
        a.label(lok)
        a.e(f"v_max_f32 v{vU}, v{vLSE}, v{vPAY}")
        a.e(f"v_sub_f32 v{vU+1}, v{vLSE}, v{vU}")
        a.e(f"v_sub_f32 v{vU+2}, v{vPAY}, v{vU}")
        a.e(f"v_sub_f32 v{vU+3}, v{vMC}, v{vU}")
        a.e(f"v_exp_f32 v{vU+1}, v{vU+1}")
        a.e(f"v_exp_f32 v{vU+2}, v{vU+2}")
        a.e(f"v_exp_f32 v{vU+3}, v{vU+3}")
        a.e(f"v_add_f32 v{vU+1}, v{vU+1}, v{vU+2}")
        a.e(f"v_rcp_f32 v{vU+1}, v{vU+1}")
        a.e(f"v_mov_b32 v{vU+4}, 0")
        a.e(f"v_mul_f32 v{vU+1}, v{vU+1}, v{vU+3}")
        a.e("s_mov_b64 exec, 1")
        a.e(f"ds_write_b32 v{vU+4}, v{vU+1} offset:{QP}")
        a.e("s_mov_b64 exec, -1")

    for grp in range(NG):
        i0 = NWQ + NG * 4 + grp * 4
        blk = grp // 4
        a.c(f"V group {grp}")
        for t in range(4):
            onehot(vOH + 4 * t, vS + blk, bitrev4((grp % 4) * 4 + t))
        a.wait(("S", i0 + 3))
        a.e("s_nop 1")
        for t in range(4):
            cs = "0" if (grp == 0 and t == 0) else vr(vACC, 4)
            a.e(f"v_mfma_f32_16x16x32_bf16 {vr(vACC,4)}, {vr(vOH+4*t,4)}, {vr(slot(i0+t),4)}, {cs}")
        st["consumed"] += 4
        top_up(DSS)
        if grp == args.g_set:
            wave0(set_flags, "setf")
        if grp == args.g_load:
            wave0(load_flags, "ldf")
            a.mark("flag_load")
        if grp == args.g_check:
            wave0(check_flags, "chk")
        if args.bar and (grp + 1) % args.bar == 0 and grp != NG - 1:
            a.e("s_barrier")

    a.c("epilogue")
    stamp(5)
    wave0(finish_factor, "fin")
    a.e("s_nop 7")
    a.e("s_mov_b32 exec_hi, 0")
    a.e(f"ds_write_b128 v{vT0+1}, {vr(vACC,4)} offset:{OP}")
    a.e("s_mov_b64 exec, -1")
    a.e(f"v_lshrrev_b32 v{vT0+2}, 2, v{vC}")
    a.e(f"v_and_b32 v{vT0+3}, 3, v{vC}")
    a.e(f"v_lshl_add_u32 v{vT0+3}, v{vT0+3}, 2, v{vR}")
    a.e(f"s_lshl_b32 s{sT}, s{sWAVE}, 4")
    a.e(f"v_add_u32 v{vT0+3}, s{sT}, v{vT0+3}")
    a.e(f"v_lshlrev_b32 v{vT0+3}, 2, v{vT0+3}")
    a.e(f"v_lshl_add_u32 v{vT0+3}, v{vT0+2}, 10, v{vT0+3}")
    a.e(f"v_mov_b32 v{vU+4}, 0")
    a.e("s_waitcnt lgkmcnt(0)")
    a.e("s_barrier")
    a.e(f"ds_read2st64_b32 {vr(vU,2)}, v{vT0+3} offset0:{OP//256} offset1:{OP//256+2}")
    a.e(f"ds_read_b32 v{vU+2}, v{vU+4} offset:{QP}")
    assert OP % 256 == 0
    a.e(f"s_mul_i32 s{sT}, s{sWAVE}, 2560")
    a.e(f"v_add_u32 v{vT0+2}, s{sT}, v{vT0}")
    a.e("s_waitcnt lgkmcnt(0)")
    a.e(f"v_add_f32 v{vU}, v{vU}, v{vU+1}")
    for sh in (4, 8):
        a.e("s_nop 1")
        a.e(f"v_add_f32_dpp v{vU}, v{vU}, v{vU} row_ror:{sh} {DPPF}")
    a.e(f"v_mul_f32 v{vU}, v{vU}, v{vU+2}")
    a.e(f"v_cvt_pk_bf16_f32 v{vU}, v{vU}, v{vU}")
    a.e("s_nop 1")
    for rg in range(RG):
        onehot(vOH + 4 * rg, vU, rg)
    a.wait([("wo", i) for i in range(20)])
    a.e("s_nop 1")
    for rg in range(RG):
        for seg in range(5):
            cs = "0" if rg == 0 else vr(vY + 4 * seg, 4)
            a.e(f"v_mfma_f32_16x16x32_bf16 {vr(vY+4*seg,4)}, {vr(vOH+4*rg,4)}, {vr(vW+4*(rg*5+seg),4)}, {cs}")
    stamp(6)
    a.e("s_mov_b32 exec_hi, 0")
    a.e("s_nop 3")
    for seg in range(5):
        a.e(f"ds_write_b128 v{vT0+2}, {vr(vY+4*seg,4)} offset:{YP+seg*512}")
    a.e("s_mov_b64 exec, -1")
    a.e(f"s_lshl_b32 s{sT}, s{sWAVE}, 9")
    a.e(f"v_lshlrev_b32 v{vT0+2}, 2, v{vLANE}")
    a.e(f"v_add_u32 v{vT0+2}, s{sT}, v{vT0+2}")
    a.e("s_waitcnt lgkmcnt(0)")
    a.e("s_barrier")
    a.e(f"s_cmp_ge_u32 s{sWAVE}, 5")
    a.e("s_cbranch_scc1 L_end")
    assert YP % 256 == 0
    for w in range(W):
        a.e(f"ds_read2st64_b32 {vr(vW+2*w,2)}, v{vT0+2} offset0:{YP//256+w*10} offset1:{YP//256+w*10+1}")
    a.e(f"s_mul_i32 s{sT}, s{sGRP}, 2560")
    a.e("s_waitcnt lgkmcnt(0)")
    for w in range(1, W):
        a.e(f"v_add_f32 v{vW}, v{vW}, v{vW+2*w}")
        a.e(f"v_add_f32 v{vW+1}, v{vW+1}, v{vW+2*w+1}")
    a.e(f"buffer_atomic_add_f32 v{vW}, v{vT0+2}, {sr(sWS,4)}, s{sT} offen offset:{WS_ACC}")
    a.e(f"buffer_atomic_add_f32 v{vW+1}, v{vT0+2}, {sr(sWS,4)}, s{sT} offen offset:{WS_ACC+256}")
    a.e("s_waitcnt vmcnt(0)")
    a.e("s_barrier")
    a.e(f"s_cmp_lg_u32 s{sWAVE}, 0")
    a.e("s_cbranch_scc1 L_end")
    a.e(f"s_lshl_b32 s{sT+1}, s{sGRP}, 6")
    a.e(f"v_mov_b32 v{vU}, 1")
    a.e(f"v_mov_b32 v{vU+1}, 0")
    a.e("s_mov_b64 exec, 1")
    a.e(f"buffer_atomic_add v{vU}, v{vU+1}, {sr(sDBG,4)}, s{sT+1} offen sc0")
    a.e("s_mov_b64 exec, -1")
    a.e("s_waitcnt vmcnt(0)")
    a.e(f"v_readfirstlane_b32 s{sT+1}, v{vU}")
    a.e("s_nop 3")
    a.e(f"s_cmp_lg_u32 s{sT+1}, 63")
    a.e("s_cbranch_scc1 L_end")
    a.e(f"v_lshlrev_b32 v{vU}, 3, v{vLANE}")
    for k in range(5):
        a.e(f"v_mov_b32 v{vW+2*k}, 0")
        a.e(f"v_mov_b32 v{vW+2*k+1}, 0")
    for k in range(5):
        a.e(f"buffer_atomic_or_x2 {vr(vW+2*k,2)}, v{vU}, {sr(sWS,4)}, s{sT} offen offset:{WS_ACC+512*k} sc0")
    a.e(f"s_mul_i32 s{sT+1}, s{sB}, 2560")
    a.e(f"s_mul_i32 s{sT+2}, s{sBLK}, 1280")
    a.e(f"s_add_u32 s{sT+1}, s{sT+1}, s{sT+2}")
    a.e(f"v_lshlrev_b32 v{vU+1}, 2, v{vLANE}")
    for k in range(5):
        a.e("s_waitcnt vmcnt(4)")
        a.e(f"v_cvt_pk_bf16_f32 v{vW+16+k}, v{vW+2*k}, v{vW+2*k+1}")
        a.e(f"buffer_store_dword v{vW+16+k}, v{vU+1}, {sr(sO,4)}, s{sT+1} offen offset:{256*k}")
    a.label("L_end")
    if inst:
        a.e("s_mov_b64 exec, -1")
        stamp(7)
        a.e(f"s_getreg_b32 s{sT+1}, hwreg(HW_REG_XCC_ID)")
        a.e(f"s_getreg_b32 s{sT+2}, hwreg(HW_REG_HW_ID)")
        a.e("s_waitcnt lgkmcnt(0)")
        a.e(f"v_mov_b32 v{vU}, 0")
        for k in range(8):
            a.e(f"v_writelane_b32 v{vU}, s{sST+2*k}, {k}")
        a.e(f"v_writelane_b32 v{vU}, s{sT+1}, 14")
        a.e(f"v_writelane_b32 v{vU}, s{sT+2}, 15")
        a.e(f"s_mul_i32 s{sT}, s{sWG}, {W}")
        a.e(f"s_add_u32 s{sT}, s{sT}, s{sWAVE}")
        a.e(f"s_lshl_b32 s{sT}, s{sT}, 6")
        a.e(f"s_add_u32 s{sT}, s{sT}, {WS_ST}")
        a.e(f"v_lshlrev_b32 v{vU+1}, 2, v{vLANE}")
        a.e("s_mov_b64 exec, 0xffff")
        a.e(f"buffer_store_dword v{vU}, v{vU+1}, {sr(sWS,4)}, s{sT} offen")
        if args.dbgt:
            a.e(f"s_cmp_lg_u32 s{sWAVE}, 0")
            a.e("s_cbranch_scc1 L_exit")
            a.e(f"s_not_b32 s{sT+1}, s{sST}")
            a.e(f"s_not_b32 s{sT+2}, s{sST+14}")
            a.e(f"v_mov_b32 v{vU+2}, 0")
            a.e(f"v_mov_b32 v{vU+3}, 0")
            items = [(1, sT+1), (2, sST+6), (3, sST+8), (12, sST+10), (13, sST+14), (14, sT+2), (15, sST+2)]
            for k, (dw, sreg) in enumerate(items):
                a.e(f"v_writelane_b32 v{vU+2}, s{sreg}, {k}")
                a.e(f"s_mov_b32 s{sT+3}, {dw*4}")
                a.e(f"v_writelane_b32 v{vU+3}, s{sT+3}, {k}")
            a.e("s_mov_b64 exec, 0x7f")
            a.e(f"buffer_atomic_umax v{vU+2}, v{vU+3}, {sr(sDBG,4)}, 0 offen")
    a.label("L_exit")
    a.e("s_endpgm")

    acc = (VGPRS + 3) // 4 * 4
    a.raw('.section .rodata,"a"')
    a.raw(".p2align 6")
    a.raw(f""".amdhsa_kernel {KNAME}
  .amdhsa_next_free_vgpr {VGPRS}
  .amdhsa_next_free_sgpr {SGPRS}
  .amdhsa_accum_offset {acc}
  .amdhsa_group_segment_fixed_size 0
  .amdhsa_kernarg_size 104
  .amdhsa_user_sgpr_count 2
  .amdhsa_user_sgpr_kernarg_segment_ptr 1
  .amdhsa_system_sgpr_workgroup_id_x 1
  .amdhsa_float_denorm_mode_32 3
.end_amdhsa_kernel
""")
    return a.text()


if __name__ == "__main__":
    ap = argparse.ArgumentParser()
    ap.add_argument("-o", default=f"cdna_kernels/{NAME}.s")
    ap.add_argument("--NP", type=int, default=28)
    ap.add_argument("--D", type=int, default=12)
    ap.add_argument("--lr", type=int, default=2)
    ap.add_argument("--pat", default="0134657892")
    ap.add_argument("--bar", type=int, default=4)
    ap.add_argument("--hbar", type=int, default=1)
    ap.add_argument("--wo0", type=int, default=0)
    ap.add_argument("--wo1", type=int, default=0)
    ap.add_argument("--wog", type=int, default=2)
    ap.add_argument("--K0", type=int, default=8)
    ap.add_argument("--K1", type=int, default=16)
    ap.add_argument("--g_set", type=int, default=3)
    ap.add_argument("--g_load", type=int, default=10)
    ap.add_argument("--g_check", type=int, default=13)
    ap.add_argument("--inst", type=int, default=0)
    ap.add_argument("--dbgt", type=int, default=0)
    args = ap.parse_args()
    open(args.o, "w").write(gen(args))
```

```python
import sys, math, struct, argparse

NAME = "concat_heads__gqa_block_cached__gqa_block_cached__decode"
KNAME = NAME + "_kernel"


def f32bits(x):
    return struct.unpack("<I", struct.pack("<f", x))[0]


def bitrev4(t):
    return ((t & 1) << 3) | ((t & 2) << 1) | ((t & 4) >> 1) | ((t & 8) >> 3)


class Asm:
    def __init__(self):
        self.lines = []
        self.vm = []
        self.nlabel = 0

    def e(self, s):
        self.lines.append("    " + s)

    def c(self, s):
        self.lines.append("    ; " + s)

    def label(self, s):
        self.lines.append(s + ":")

    def newlabel(self, base):
        self.nlabel += 1
        return f"L_{base}_{self.nlabel}"

    def raw(self, s):
        self.lines.append(s)

    def vmem(self, s, tag):
        self.e(s)
        self.vm.append(tag)
        assert len(self.vm) <= 58, "too many outstanding vmem ops"

    def mark(self, tag):
        self.vm.append(("mark", tag))

    def count_after(self, tag):
        idx = max(i for i, t in enumerate(self.vm) if t == tag)
        return sum(1 for t in self.vm[idx + 1:] if not (isinstance(t, tuple) and t[0] == "mark"))

    def wait(self, tags):
        if not isinstance(tags, (list, set)):
            tags = [tags]
        last = -1
        for i, t in enumerate(self.vm):
            if t in tags:
                last = i
        if last < 0:
            return
        n = sum(1 for t in self.vm[last + 1:] if not (isinstance(t, tuple) and t[0] == "mark"))
        self.e(f"s_waitcnt vmcnt({n})")
        self.vm = self.vm[last + 1:]

    def limit(self, n):
        real = [i for i, t in enumerate(self.vm) if not (isinstance(t, tuple) and t[0] == "mark")]
        if len(real) <= n:
            return
        last = real[len(real) - n - 1]
        self.e(f"s_waitcnt vmcnt({n})")
        self.vm = self.vm[last + 1:]

    def text(self):
        return "\n".join(self.lines) + "\n"


def vr(a, n=1):
    return f"v{a}" if n == 1 else f"v[{a}:{a+n-1}]"


def sr(a, n=1):
    return f"s{a}" if n == 1 else f"s[{a}:{a+n-1}]"


def gen(args):
    a = Asm()
    W = 8
    NP = args.NP
    DSS = args.D
    inst = args.inst
    hint = " nt"
    NG = 16
    NB = 4
    NWQ = 20
    RG = 4
    CSCALE = (128 ** -0.5) * math.log2(math.e)
    LR = args.lr

    QP = 0
    QF = QP + W * 512
    MX = QF + W * 256
    LS = MX + 64
    FF = LS + 64
    OP = MX + 256
    YP = OP + W * 512
    MODEA = YP + W * 2560
    LDS_BYTES = MODEA + 64

    WS_ACC = 0
    WS_LSE = 65536
    WS_ST = 4 * 1024 * 1024
    DBG_FLAG = 16
    DBG_ZERO = 80

    vTID, vLANE, vC, vR, vKOFF, vWQOFF, vWOOFF, vXOFF, vX0, vX1 = range(10)
    vT0 = 10
    vKOFF2 = 15
    vZ = 14
    vMODE = 55
    vQ = 16
    vMASK = 20
    vACC = 24
    vS = 28
    vOH = 32
    vT = vOH
    vR2 = vOH + 4
    vU = 48
    vBUF = 56
    vW = vBUF + NP * 4
    vY = vBUF
    VGPRS = vW + NWQ * 4
    assert VGPRS <= 256, VGPRS
    vLSE = vX0
    vFLG = vX1
    vPAY = vXOFF
    vMC = vWQOFF

    sWG = 2
    sKA = 4
    sP = 8
    sOUT = 20
    sBLK, sH, sB, sSPLIT, sWAVE, sIDX = 26, 27, 28, 29, 30, 31
    sK, sV, sWQ, sWO, sX, sWS = 32, 36, 40, 44, 48, 52
    sOFF = 56
    sT = 57
    sM1, sM0 = 64, 66
    sCS = 68
    sGRP = 69
    sOK = 70
    sQO = 71
    sDBG = 72
    sO = 76
    sLSE, sPAY, sFLG, sZF, sREP, sFO, sZO, sSHO = 6, 7, 18, 19, 3, 62, 63, 61
    sST = 80
    SGPRS = 80 if not inst else 100

    def stamp(k):
        if inst:
            a.e(f"s_memrealtime s[{sST+2*k}:{sST+2*k+1}]")

    DPPF = "row_mask:0xf bank_mask:0xf"

    a.raw(f"; @launch grid=(256,1,1) block=({W*64},1,1) lds={LDS_BYTES}")
    a.raw('.amdgcn_target "amdgcn-amd-amdhsa--gfx950"')
    a.raw(".text")
    a.raw(f".globl {KNAME}")
    a.raw(".p2align 8")
    a.raw(f".type {KNAME},@function")
    a.label(KNAME)
    a.e(f"s_cmp_ge_u32 s{sWG}, 256")
    a.e("s_cbranch_scc1 L_exit")
    stamp(0)
    a.e(f"s_and_b32 s{sT}, s{sWG}, 7")
    a.e(f"s_lshr_b32 s{sBLK}, s{sT}, 2")
    a.e(f"s_mul_i32 s{sT+3}, s{sBLK}, 40")
    a.e(f"s_add_u32 s{sKA}, s0, s{sT+3}")
    a.e(f"s_addc_u32 s{sKA+1}, s1, 0")
    a.e(f"s_load_dwordx8 {sr(sP,8)}, {sr(sKA,2)}, 0")
    a.e(f"s_load_dwordx2 {sr(sP+8,2)}, {sr(sKA,2)}, 32")
    a.e(f"s_load_dwordx4 {sr(sOUT,4)}, s[0:1], 80")
    a.e(f"s_load_dwordx2 {sr(sOUT+4,2)}, s[0:1], 96")
    a.e(f"s_lshr_b32 s{sT+1}, s{sWG}, 3")
    a.e(f"s_lshl_b32 s{sT}, s{sT}, 3")
    a.e(f"s_lshr_b32 s{sT+2}, s{sT+1}, 2")
    a.e(f"s_add_u32 s{sT}, s{sT}, s{sT+2}")
    a.e(f"s_and_b32 s{sH}, s{sT}, 31")
    a.e(f"s_lshr_b32 s{sB}, s{sT+1}, 1")
    a.e(f"s_and_b32 s{sB}, s{sB}, 1")
    a.e(f"s_and_b32 s{sSPLIT}, s{sT+1}, 1")
    a.e(f"v_and_b32 v{vLANE}, 63, v{vTID}")
    a.e(f"v_lshrrev_b32 v{vT0}, 6, v{vTID}")
    a.e(f"v_and_b32 v{vC}, 15, v{vTID}")
    a.e(f"v_readfirstlane_b32 s{sWAVE}, v{vT0}")
    a.e(f"v_lshrrev_b32 v{vR}, 4, v{vLANE}")
    a.e(f"s_lshl_b32 s{sGRP}, s{sBLK}, 1")
    a.e(f"s_add_u32 s{sGRP}, s{sGRP}, s{sB}")
    a.e(f"s_lshl_b32 s{sIDX}, s{sGRP}, 5")
    a.e(f"s_add_u32 s{sIDX}, s{sIDX}, s{sH}")
    a.e(f"s_lshl_b32 s{sIDX}, s{sIDX}, 1")
    a.e(f"s_add_u32 s{sIDX}, s{sIDX}, s{sSPLIT}")
    PT = [int(ch) for ch in args.pat[:10]]
    assert sorted(PT) == list(range(10))
    COL = [0] * 10
    for k, src in enumerate([0, 1, 6, 7, 8, 2, 3, 4, 5, 9]):
        COL[src] = 1 << PT[k]
    r = args.pat[10:]
    while r:
        assert r[0] == "+"
        COL[int(r[1])] ^= 1 << int(r[2])
        r = r[3:]
    WSMASK = COL[6] | COL[7] | COL[8] | COL[9]
    a.e(f"v_lshlrev_b32 v{vKOFF}, 4, v{vLANE}")
    a.e(f"s_mul_i32 s{sT}, s{sSPLIT}, {COL[9] << 10}")
    for k in range(3):
        a.e(f"s_bfe_u32 s{sT+1}, s{sWAVE}, 0x{(1<<16)|k:x}")
        a.e(f"s_mul_i32 s{sT+1}, s{sT+1}, {COL[6+k] << 10}")
        a.e(f"s_xor_b32 s{sT}, s{sT}, s{sT+1}")
    a.e(f"v_add_u32 v{vKOFF}, s{sT}, v{vKOFF}")

    def tile_T(t):
        T = 0
        for k in range(6):
            if (t >> k) & 1:
                T ^= COL[k]
        return T
    OVL = sorted(set(tile_T(t) & WSMASK for t in range(64)))
    assert len(OVL) <= 2
    KOFFREG = {0: vKOFF}
    if len(OVL) == 2:
        KOFFREG[OVL[1]] = vKOFF2
        a.e(f"v_xor_b32 v{vKOFF2}, {OVL[1] << 10}, v{vKOFF}")
    a.e(f"s_mul_i32 s{sT}, s{sWAVE}, {NWQ*4}")
    a.e(f"v_add_u32 v{vWQOFF}, s{sT}, v{vR}")
    a.e(f"v_lshlrev_b32 v{vWQOFF}, 13, v{vWQOFF}")
    a.e(f"v_lshl_add_u32 v{vWQOFF}, v{vC}, 4, v{vWQOFF}")
    if args.rot:
        a.e(f"s_lshl_b32 s{sQO}, s{sB}, 1")
        a.e(f"s_add_u32 s{sQO}, s{sQO}, s{sSPLIT}")
        a.e(f"s_mul_i32 s{sQO}, s{sQO}, 5")
        for reg, add in ((vXOFF, 0), (vX1, 16)):
            a.e(f"v_add_u32 v{reg}, s{sQO}, v{vC}")
            if add:
                a.e(f"v_add_u32 v{reg}, {add}, v{reg}")
            for _ in range(2 if add else 1):
                a.e(f"v_subrev_u32 v{vT0}, 20, v{reg}")
                a.e(f"v_min_u32 v{reg}, v{reg}, v{vT0}")
            a.e(f"v_lshl_add_u32 v{reg}, v{reg}, 2, v{vR}")
            a.e(f"v_add_u32 v{reg}, s{sT}, v{reg}")
            a.e(f"v_lshlrev_b32 v{reg}, 1, v{reg}")
        a.e(f"s_lshl_b32 s{sQO}, s{sQO}, 15")
    else:
        a.e(f"v_lshl_add_u32 v{vXOFF}, v{vC}, 2, v{vR}")
        a.e(f"v_add_u32 v{vXOFF}, s{sT}, v{vXOFF}")
        a.e(f"v_lshlrev_b32 v{vXOFF}, 1, v{vXOFF}")
        a.e(f"v_add_u32 v{vX1}, 128, v{vXOFF}")
    a.e(f"s_mul_i32 s{sT}, s{sWAVE}, {RG*4}")
    a.e(f"v_add_u32 v{vWOOFF}, s{sT}, v{vR}")
    a.e(f"v_mul_u32_u24 v{vWOOFF}, 1280, v{vWOOFF}")
    a.e(f"v_lshl_add_u32 v{vWOOFF}, v{vC}, 4, v{vWOOFF}")
    a.e("s_waitcnt lgkmcnt(0)")
    stamp(1)
    a.e(f"s_mul_i32 s{sT}, s{sB}, 1280")
    a.e(f"s_add_u32 s{sX}, s{sP}, s{sT}")
    a.e(f"s_addc_u32 s{sX+1}, s{sP+1}, 0")
    a.e(f"s_mov_b32 s{sX+2}, 1280")
    a.e(f"s_mov_b32 s{sX+3}, 0x20000")
    a.e(f"s_lshl_b32 s{sT}, s{sH}, 8")
    a.e(f"s_add_u32 s{sWQ}, s{sP+6}, s{sT}")
    a.e(f"s_addc_u32 s{sWQ+1}, s{sP+7}, 0")
    a.e(f"s_sub_u32 s{sWQ+2}, {640*8192}, s{sT}")
    a.e(f"s_mov_b32 s{sWQ+3}, 0x20000")

    stream = [("K", t) for t in range(NG * 4)] + [("V", t) for t in range(NG * 4)]
    st = {"issued": 0, "consumed": 0, "soff": None}

    def set_soff(v):
        if v == 0:
            return "0"
        if st["soff"] != v:
            a.e(f"s_mov_b32 s{sOFF}, {v}")
            st["soff"] = v
        return f"s{sOFF}"

    def slot(i):
        return vBUF + (i % NP) * 4

    def issue_one(lim=0):
        if lim:
            a.limit(lim - 1)
        i = st["issued"]
        kind, t = stream[i]
        buf = slot(i)
        if True:
            srd = sK if kind == "K" else sV
            T = tile_T(t)
            koff = KOFFREG[T & WSMASK]
            off = (T & ~WSMASK) << 10
            imm = off % 4096
            sos = set_soff(off - imm)
            immS = f" offset:{imm}" if imm else ""
            a.vmem(f"buffer_load_dwordx4 {vr(buf,4)}, v{koff}, {sr(srd,4)}, {sos} offen{immS}{hint}", ("S", i))
        st["issued"] = i + 1

    def top_up(limit):
        limit = min(limit, NP)
        while st["issued"] < len(stream) and st["issued"] - st["consumed"] < limit:
            issue_one()

    def arrive(i_last):
        if not args.DT:
            a.wait(("S", i_last))
            return
        def one():
            if wo_state["n"] < 20 and args.wot and st["issued"] % args.wot == 0 and qst["done"] == 5:
                issue_wo(1)
            issue_one()
        if st["issued"] - (i_last + 1) >= args.DT:
            n = args.cu if st.get("primed") else args.DT
            for _ in range(n):
                if st["issued"] < len(stream) and st["issued"] - st["consumed"] < NP:
                    a.limit(args.DT - 1)
                    one()
                    st["primed"] = True
            a.wait(("S", i_last))
            return
        for i in range(i_last - 3, i_last + 1):
            a.wait(("S", i))
            while st["issued"] < len(stream) and st["issued"] - (i + 1) < args.DT and st["issued"] - st["consumed"] < NP:
                if args.fc and fcs["on"] and len(a.vm) > args.DS - 1:
                    l = a.newlabel("sh")
                    a.e(f"s_cbranch_vccnz {l}")
                    a.e(f"s_waitcnt vmcnt({args.DS - 1})")
                    a.label(l)
                one()

    fcs = {"on": False, "k": 0, "pend": None, "rd": False}

    def flow(G):
        if not args.fc:
            return
        if fcs["rd"]:
            a.e("s_waitcnt lgkmcnt(0)")
            a.e(f"v_readfirstlane_b32 s{sT}, v{vMODE}")
            a.e("s_nop 3")
            a.e(f"s_cmp_lg_u32 s{sT}, 0")
            a.e("s_cselect_b64 vcc, -1, 0")
            fcs["on"] = True
            fcs["rd"] = False
        if fcs["pend"] is not None:
            k = fcs["pend"]
            def wr():
                a.e("s_waitcnt lgkmcnt(0)")
                a.e(f"s_cmp_ge_u32 s{sREP}, {64*k + args.theta}")
                a.e(f"s_cselect_b32 s{sT}, 1, 0")
                a.e(f"v_mov_b32 v{vMODE}, s{sT}")
                a.e(f"ds_write_b32 v{vZ}, v{vMODE} offset:{MODEA}")
            wave0(wr, "fw")
            fcs["pend"] = None
        if G >= args.fg0 and G <= args.fg1 and (G - args.fg0) % args.fp == 0:
            def rep():
                a.e(f"s_mov_b32 s{sREP}, 1")
                a.e(f"s_atomic_add s{sREP}, {sr(sOUT+2,2)}, s{sSHO} glc")
            wave0(rep, "fr")
            fcs["pend"] = fcs["k"]
            fcs["k"] += 1

    def flow_read(G):
        if args.fc and G > args.fg0 and G < 31:
            a.e(f"ds_read_b32 v{vMODE}, v{vZ} offset:{MODEA}")
            fcs["rd"] = True

    def wave0(fn, nm):
        if args.nosync:
            return
        l = a.newlabel(nm)
        a.e(f"s_cmp_lg_u32 s{sWAVE}, 0")
        a.e(f"s_cbranch_scc1 {l}")
        fn()
        a.label(l)

    a.vmem(f"buffer_load_ushort v{vX0}, v{vXOFF}, {sr(sX,4)}, 0 offen nt", "x")
    a.vmem(f"buffer_load_ushort v{vX1}, v{vX1}, {sr(sX,4)}, 0 offen nt", "x")
    a.e(f"s_bfe_u32 s{sT}, s{sIDX}, 0x60001")
    a.e(f"s_lshl_b32 s{sT}, s{sT}, 20")
    a.e(f"s_add_u32 s{sK}, s{sP+2}, s{sT}")
    a.e(f"s_addc_u32 s{sK+1}, s{sP+3}, 0")
    a.e(f"s_mov_b32 s{sK+2}, {1024*1024}")
    a.e(f"s_mov_b32 s{sK+3}, 0x20000")
    a.e(f"s_add_u32 s{sV}, s{sP+4}, s{sT}")
    a.e(f"s_addc_u32 s{sV+1}, s{sP+5}, 0")
    a.e(f"s_mov_b32 s{sV+2}, {1024*1024}")
    a.e(f"s_mov_b32 s{sV+3}, 0x20000")
    a.e(f"s_mul_i32 s{sT}, s{sH}, {128*1280}")
    a.e(f"s_add_u32 s{sWO}, s{sP+8}, s{sT}")
    a.e(f"s_addc_u32 s{sWO+1}, s{sP+9}, 0")
    a.e(f"s_mov_b32 s{sWO+2}, {128*1280}")
    a.e(f"s_mov_b32 s{sWO+3}, 0x20000")
    a.e(f"s_mov_b32 s{sWS}, s{sOUT+4}")
    a.e(f"s_mov_b32 s{sWS+1}, s{sOUT+5}")
    a.e(f"s_mov_b32 s{sWS+2}, {8*1024*1024}")
    a.e(f"s_mov_b32 s{sWS+3}, 0x20000")
    a.e(f"s_mov_b32 s{sDBG}, s{sOUT+2}")
    a.e(f"s_mov_b32 s{sDBG+1}, s{sOUT+3}")
    a.e(f"s_mov_b32 s{sDBG+2}, 256")
    a.e(f"s_mov_b32 s{sDBG+3}, 0x20000")
    a.e(f"s_mov_b32 s{sO}, s{sOUT}")
    a.e(f"s_mov_b32 s{sO+1}, s{sOUT+1}")
    a.e(f"s_mov_b32 s{sO+2}, 5120")
    a.e(f"s_mov_b32 s{sO+3}, 0x20000")
    wo_state = {"n": 0}

    def issue_wo(n):
        for _ in range(n):
            k = wo_state["n"]
            if k >= 20:
                return
            rg, seg = divmod(k, 5)
            sos = set_soff(rg * 5120)
            immS = f" offset:{seg*256}" if seg else ""
            if not args.noo: a.vmem(f"buffer_load_dwordx4 {vr(vW+4*k,4)}, v{vWOOFF}, {sr(sWO,4)}, {sos} offen{immS}{hint}", ("wo", k))
            wo_state["n"] = k + 1

    qst = {"issued": 0, "done": 0, "prep": False}

    def issue_q(n=4):
        for _ in range(n):
            t = qst["issued"]
            if args.Dh:
                a.limit(args.Dh - 1)
            sos = f"s{sQO}" if args.rot else set_soff(t * 32768)
            if not args.noq: a.vmem(f"buffer_load_dwordx4 {vr(vW+4*t,4)}, v{vWQOFF}, {sr(sWQ,4)}, {sos} offen{hint}", ("Q", t))
            if args.rot and t < 19:
                a.e(f"s_add_u32 s{sQO}, s{sQO}, 32768")
                if t % 5 == 4:
                    a.e(f"s_cmp_eq_u32 s{sQO}, {20*32768}")
                    a.e(f"s_cselect_b32 s{sQO}, 0, s{sQO}")
            qst["issued"] += 1

    def onehot(dst, src, lane):
        for j in range(4):
            a.e(f"v_and_b32_dpp v{dst+j}, v{src}, v{vMASK+j} row_newbcast:{lane} {DPPF}")

    def consume_q():
        if not qst["prep"]:
            prep()
            a.wait("x")
            a.e(f"v_lshl_or_b32 v{vX0}, v{vX0}, 16, v{vX0}")
            a.e(f"v_lshl_or_b32 v{vX1}, v{vX1}, 16, v{vX1}")
            a.e("s_nop 1")
            qst["prep"] = True
        g0 = qst["done"] * 4
        for t in range(4):
            i = g0 + t
            onehot(vOH + 4 * t, vX0 if i < 16 else vX1, i % 16)
        a.wait(("Q", g0 + 3))
        a.e("s_nop 1")
        for t in range(4):
            i = g0 + t
            cs = "0" if i == 0 else vr(vACC, 4)
            a.e(f"v_mfma_f32_16x16x32_bf16 {vr(vACC,4)}, {vr(vOH+4*t,4)}, {vr(vW+4*i,4)}, {cs}")
        qst["done"] += 1

    def run_seq(seq):
        for ch in seq:
            if ch == "Q":
                issue_q()
            elif ch == "K":
                for _ in range(4):
                    issue_one(args.Dh)
                assert st["issued"] - st["consumed"] <= NP
            elif ch == "k":
                for _ in range(2):
                    issue_one(args.Dh)
                assert st["issued"] - st["consumed"] <= NP
            elif ch == "q":
                issue_q(1)
            elif ch == "x":
                issue_one(args.Dh)
                assert st["issued"] - st["consumed"] <= NP
            elif ch == "B":
                a.e("s_barrier")
            elif ch == "M":
                consume_q()
            elif ch == "O":
                assert wo_state["n"] + 4 <= qst["done"] * 4
                issue_wo(4)
            else:
                raise ValueError(ch)

    def prep():
        lz = a.newlabel("nozero")
        a.e(f"s_and_b32 s{sT}, s{sIDX}, 63")
        a.e(f"s_cmp_lg_u32 s{sT}, 0")
        a.e(f"s_cbranch_scc1 {lz}")
        a.e(f"s_cmp_lg_u32 s{sWAVE}, 0")
        a.e(f"s_cbranch_scc1 {lz}")
        for k in range(4):
            a.e(f"v_mov_b32 v{vU+k}, 0")
        a.e(f"v_lshlrev_b32 v{vU+4}, 4, v{vLANE}")
        a.e(f"s_mul_i32 s{sT}, s{sGRP}, 2560")
        a.e(f"buffer_store_dwordx4 {vr(vU,4)}, v{vU+4}, {sr(sWS,4)}, s{sT} offen offset:{WS_ACC} sc1")
        a.e(f"buffer_store_dwordx4 {vr(vU,4)}, v{vU+4}, {sr(sWS,4)}, s{sT} offen offset:{WS_ACC+1024} sc1")
        a.e("s_mov_b32 exec_hi, 0")
        a.e(f"buffer_store_dwordx4 {vr(vU,4)}, v{vU+4}, {sr(sWS,4)}, s{sT} offen offset:{WS_ACC+2048} sc1")
        a.e("s_mov_b64 exec, -1")
        a.e(f"v_lshlrev_b32 v{vU+4}, 7, v{vLANE}")
        a.e(f"s_lshl_b32 s{sT}, s{sGRP}, 13")
        a.e(f"s_add_u32 s{sT}, s{sT}, {WS_LSE}")
        a.e(f"buffer_store_dword v{vU}, v{vU+4}, {sr(sWS,4)}, s{sT} offen sc1")
        a.label(lz)
        a.mark("zst")
        a.e(f"v_and_b32 v{vT0}, 1, v{vC}")
        a.e(f"v_lshlrev_b32 v{vT0}, 4, v{vT0}")
        a.e(f"v_mov_b32 v{vT0+1}, 0xffff")
        a.e(f"v_lshlrev_b32 v{vT0+1}, v{vT0}, v{vT0+1}")
        a.e(f"v_lshrrev_b32 v{vT0+2}, 1, v{vC}")
        for j in range(4):
            a.e(f"v_cmp_eq_u32 vcc, {j}, v{vT0+2}")
            a.e("s_nop 1")
            a.e(f"v_cndmask_b32 v{vMASK+j}, 0, v{vT0+1}, vcc")
        a.e(f"s_mov_b32 s{sM1}, 0xcccccccc")
        a.e(f"s_mov_b32 s{sM1+1}, 0xcccccccc")
        a.e(f"s_mov_b32 s{sM0}, 0xaaaaaaaa")
        a.e(f"s_mov_b32 s{sM0+1}, 0xaaaaaaaa")
        a.e(f"s_mov_b32 s{sCS}, 0x{f32bits(CSCALE):08x}")
        a.e(f"v_lshlrev_b32 v{vT0}, 5, v{vC}")
        a.e(f"v_lshl_add_u32 v{vT0}, v{vR}, 4, v{vT0}")
        a.e(f"s_lshl_b32 s{sT}, s{sWAVE}, 9")
        a.e(f"v_add_u32 v{vT0+1}, s{sT}, v{vT0}")
        a.e(f"s_lshl_b32 s{sZO}, s{sGRP}, 6")
        a.e(f"s_lshl_b32 s{sFO}, s{sIDX}, 7")
        a.e(f"s_add_u32 s{sFO}, s{sFO}, {WS_LSE}")
        a.e(f"s_add_u32 s{sZO}, s{sZO}, 8")
        a.e(f"s_lshl_b32 s{sSHO}, s{sB}, 1")
        a.e(f"s_add_u32 s{sSHO}, s{sSHO}, s{sSPLIT}")
        a.e(f"s_lshl_b32 s{sSHO}, s{sSHO}, 6")
        a.e(f"s_add_u32 s{sSHO}, s{sSHO}, 4")
        a.e(f"s_mov_b32 s{sOK}, 0")
        a.e("s_mov_b64 vcc, -1")
        if args.fc:
            a.e(f"v_mov_b32 v{vZ}, 0")
            a.e(f"v_mov_b32 v{vMODE}, 1")
            a.e(f"ds_write_b32 v{vZ}, v{vMODE} offset:{MODEA}")

    run_seq(args.head)
    assert qst["issued"] == 20
    while qst["done"] < 5:
        consume_q()
    stamp(2)
    a.e("s_nop 7")
    a.e("s_mov_b32 exec_hi, 0")
    a.e(f"ds_write_b128 v{vT0+1}, {vr(vACC,4)} offset:{QP}")
    a.e("s_mov_b64 exec, -1")
    run_seq(args.head2)
    a.e(f"v_lshlrev_b32 v{vT0+2}, 3, v{vLANE}")
    a.e("s_waitcnt lgkmcnt(0)")
    a.e("s_barrier")
    for w in range(W):
        a.e(f"ds_read_b64 {vr(vOH+2*w,2)}, v{vT0+2} offset:{QP+w*512}")
    a.e(f"s_lshl_b32 s{sT}, s{sWAVE}, 8")
    a.e(f"v_lshlrev_b32 v{vT0+2}, 2, v{vLANE}")
    a.e(f"v_add_u32 v{vT0+2}, s{sT}, v{vT0+2}")
    a.e(f"v_lshlrev_b32 v{vT0+3}, 4, v{vC}")
    a.e(f"v_add_u32 v{vT0+3}, s{sT}, v{vT0+3}")
    a.e("s_waitcnt lgkmcnt(0)")
    for k in range(1, W):
        a.e(f"v_add_f32 v{vOH}, v{vOH}, v{vOH+2*k}")
        a.e(f"v_add_f32 v{vOH+1}, v{vOH+1}, v{vOH+2*k+1}")
    a.e(f"v_cvt_pk_bf16_f32 v{vU}, v{vOH}, v{vOH+1}")
    a.e(f"ds_write_b32 v{vT0+2}, v{vU} offset:{QF}")
    a.e("s_waitcnt lgkmcnt(0)")
    a.e(f"ds_read_b128 {vr(vQ,4)}, v{vT0+3} offset:{QF}")
    a.e("s_waitcnt lgkmcnt(0)")
    stamp(3)

    for grp in range(NG):
        i0 = grp * 4
        a.c(f"K group {grp}")
        flow(grp)
        arrive(i0 + 3)
        flow_read(grp)
        if grp == args.g_zset:
            def zset():
                l = a.newlabel("nz")
                a.e(f"s_and_b32 s{sT}, s{sIDX}, 63")
                a.e(f"s_cmp_lg_u32 s{sT}, 0")
                a.e(f"s_cbranch_scc1 {l}")
                a.e(f"s_mov_b32 s{sZF}, 1")
                a.e(f"s_atomic_or s{sZF}, {sr(sOUT+2,2)}, s{sZO} glc")
                a.label(l)
            assert ("mark", "zst") not in a.vm
            wave0(zset, "zs")
        if grp == args.g_zld:
            def zld():
                a.e("s_waitcnt lgkmcnt(0)")
                a.e(f"s_load_dword s{sZF}, {sr(sOUT+2,2)}, s{sZO} glc")
            wave0(zld, "zl")
        for j in range(4):
            for t in range(4):
                cs = "0" if j == 0 else f"v{vT+t}"
                a.e(f"v_dot2_f32_bf16 v{vT+t}, v{slot(i0+t)+j}, v{vQ+j}, {cs}")
        st["consumed"] += 4
        if not args.DT:
            issue_wo(args.wog)
            top_up(DSS)
        a.e("s_nop 2")
        a.e(f"v_add_f32_dpp v{vT}, v{vT}, v{vT} row_ror:8 row_mask:0xf bank_mask:0x3")
        a.e(f"v_add_f32_dpp v{vT+2}, v{vT+2}, v{vT+2} row_ror:8 row_mask:0xf bank_mask:0x3")
        a.e(f"v_add_f32_dpp v{vT}, v{vT+1}, v{vT+1} row_ror:8 row_mask:0xf bank_mask:0xc")
        a.e(f"v_add_f32_dpp v{vT+2}, v{vT+3}, v{vT+3} row_ror:8 row_mask:0xf bank_mask:0xc")
        a.e("s_nop 1")
        gq = grp % 4
        a.e(f"v_add_f32_dpp v{vR2+gq}, v{vT}, v{vT} row_half_mirror row_mask:0xf bank_mask:0x5")
        a.e(f"v_add_f32_dpp v{vR2+gq}, v{vT+2}, v{vT+2} row_half_mirror row_mask:0xf bank_mask:0xa")
        if gq == 3:
            blk = grp // 4
            a.e("s_nop 1")
            for k in range(4):
                a.e(f"v_add_f32_dpp v{vR2+k}, v{vR2+k}, v{vR2+k} quad_perm:[2,3,0,1] {DPPF}")
            a.e(f"v_cndmask_b32 v{vR2}, v{vR2}, v{vR2+1}, {sr(sM1,2)}")
            a.e(f"v_cndmask_b32 v{vR2+2}, v{vR2+2}, v{vR2+3}, {sr(sM1,2)}")
            a.e("s_nop 1")
            a.e(f"v_add_f32_dpp v{vR2}, v{vR2}, v{vR2} quad_perm:[1,0,3,2] {DPPF}")
            a.e(f"v_add_f32_dpp v{vR2+2}, v{vR2+2}, v{vR2+2} quad_perm:[1,0,3,2] {DPPF}")
            a.e(f"v_cndmask_b32 v{vS+blk}, v{vR2}, v{vR2+2}, {sr(sM0,2)}")
        if args.bar and (grp + 1) % args.bar == 0 and grp != NG - 1:
            a.e("s_barrier")

    a.c("softmax")
    stamp(4)
    vM = vU
    a.e(f"v_max_f32 v{vM}, v{vS}, v{vS+1}")
    a.e(f"v_max3_f32 v{vM}, v{vM}, v{vS+2}, v{vS+3}")
    for sh in (8, 4, 2, 1):
        a.e("s_nop 1")
        a.e(f"v_max_f32_dpp v{vM}, v{vM}, v{vM} row_ror:{sh} {DPPF}")
    a.e(f"s_lshl_b32 s{sT}, s{sWAVE}, 4")
    a.e(f"v_lshl_add_u32 v{vT0+2}, v{vR}, 2, s{sT}")
    a.e("s_mov_b32 exec_lo, 0x00010001")
    a.e("s_mov_b32 exec_hi, 0x00010001")
    a.e(f"ds_write_b32 v{vT0+2}, v{vM} offset:{MX}")
    a.e("s_mov_b64 exec, -1")
    a.e(f"v_lshlrev_b32 v{vT0+3}, 3, v{vC}")
    a.e("s_waitcnt lgkmcnt(0)")
    a.e("s_barrier")
    a.e(f"ds_read_b64 {vr(vU+2,2)}, v{vT0+3} offset:{MX}")
    a.e("s_waitcnt lgkmcnt(0)")
    a.e(f"v_max_f32 v{vM}, v{vU+2}, v{vU+3}")
    for sh in (8, 4, 2, 1):
        a.e("s_nop 1")
        a.e(f"v_max_f32_dpp v{vM}, v{vM}, v{vM} row_ror:{sh} {DPPF}")
    vL = vU + 2
    a.e(f"v_mul_f32 v{vMC}, s{sCS}, v{vM}")
    for k in range(NB):
        a.e(f"v_fma_f32 v{vS+k}, v{vS+k}, s{sCS}, -v{vMC}")
    for k in range(NB):
        a.e(f"v_exp_f32 v{vS+k}, v{vS+k}")
    a.e("s_nop 0")
    for k in range(NB):
        a.e(f"v_cvt_pk_bf16_f32 v{vS+k}, v{vS+k}, v{vS+k}")
    for k in range(NB):
        a.e(f"v_and_b32 v{vT+k}, 0xffff0000, v{vS+k}")
    a.e(f"v_add_f32 v{vL}, v{vT}, v{vT+1}")
    a.e(f"v_add_f32 v{vT+2}, v{vT+2}, v{vT+3}")
    a.e(f"v_add_f32 v{vL}, v{vL}, v{vT+2}")
    for sh in (8, 4, 2, 1):
        a.e("s_nop 1")
        a.e(f"v_add_f32_dpp v{vL}, v{vL}, v{vL} row_ror:{sh} {DPPF}")
    a.e("s_mov_b32 exec_lo, 0x00010001")
    a.e("s_mov_b32 exec_hi, 0x00010001")
    a.e(f"ds_write_b32 v{vT0+2}, v{vL} offset:{MX+128}")
    a.e("s_mov_b64 exec, -1")
    a.e("s_waitcnt lgkmcnt(0)")
    a.e("s_barrier")

    def wave0(fn, nm):
        if args.nosync:
            return
        l = a.newlabel(nm)
        a.e(f"s_cmp_lg_u32 s{sWAVE}, 0")
        a.e(f"s_cbranch_scc1 {l}")
        fn()
        a.label(l)

    sDB = sr(sOUT + 2, 2)
    sWB = sr(sOUT + 4, 2)

    def spin_nonzero(reg, base, off, nm):
        lok = a.newlabel(nm + "ok")
        lsp = a.newlabel(nm + "sp")
        a.e(f"s_cmp_lg_u32 s{reg}, 0")
        a.e(f"s_cbranch_scc1 {lok}")
        a.e(f"s_mov_b32 s{sT+3}, 0")
        a.label(lsp)
        a.e(f"s_atomic_or s{reg}, {base}, s{off} glc")
        a.e(f"s_add_u32 s{sT+3}, s{sT+3}, 1")
        a.e(f"s_lshr_b32 s{sT+1}, s{sT+3}, 18")
        a.e("s_waitcnt lgkmcnt(0)")
        a.e(f"s_or_b32 s{sT+1}, s{sT+1}, s{reg}")
        a.e(f"s_cmp_eq_u32 s{sT+1}, 0")
        a.e(f"s_cbranch_scc1 {lsp}")
        a.label(lok)

    def publish_lse():
        a.e(f"ds_read_b64 {vr(vU+2,2)}, v{vT0+3} offset:{MX+128}")
        a.e("s_waitcnt lgkmcnt(0)")
        a.e(f"v_add_f32 v{vL}, v{vU+2}, v{vU+3}")
        for sh in (8, 4, 2, 1):
            a.e("s_nop 1")
            a.e(f"v_add_f32_dpp v{vL}, v{vL}, v{vL} row_ror:{sh} {DPPF}")
        a.e(f"v_log_f32 v{vL}, v{vL}")
        a.e("s_nop 0")
        a.e(f"v_add_f32 v{vL}, v{vL}, v{vMC}")
        a.e("s_nop 0")
        a.e(f"v_readfirstlane_b32 s{sLSE}, v{vL}")
        spin_nonzero(sZF, sDB, sZO, "z")
        a.e(f"s_not_b32 s{sPAY}, s{sLSE}")
        a.e(f"s_max_u32 s{sPAY}, s{sPAY}, 1")
        a.e(f"s_atomic_swap s{sPAY}, {sWB}, s{sFO} glc")
    wave0(publish_lse, "pub")

    def load_payload():
        a.e("s_waitcnt lgkmcnt(0)")
        a.e(f"s_xor_b32 s{sFO}, s{sFO}, 128")
        a.e(f"s_load_dword s{sPAY}, {sWB}, s{sFO} glc")

    def finish_factor():
        a.e("s_waitcnt lgkmcnt(0)")
        spin_nonzero(sPAY, sWB, sFO, "p")
        a.e(f"s_not_b32 s{sPAY}, s{sPAY}")
        a.e(f"v_mov_b32 v{vU+2}, s{sPAY}")
        a.e(f"v_max_f32 v{vU}, s{sLSE}, v{vU+2}")
        a.e(f"v_sub_f32 v{vU+1}, s{sLSE}, v{vU}")
        a.e(f"v_sub_f32 v{vU+2}, v{vU+2}, v{vU}")
        a.e(f"v_sub_f32 v{vU+3}, v{vMC}, v{vU}")
        a.e(f"v_exp_f32 v{vU+1}, v{vU+1}")
        a.e(f"v_exp_f32 v{vU+2}, v{vU+2}")
        a.e(f"v_exp_f32 v{vU+3}, v{vU+3}")
        a.e(f"v_add_f32 v{vU+1}, v{vU+1}, v{vU+2}")
        a.e(f"v_rcp_f32 v{vU+1}, v{vU+1}")
        a.e(f"v_mov_b32 v{vU+4}, 0")
        a.e(f"v_mul_f32 v{vU+1}, v{vU+1}, v{vU+3}")
        a.e("s_mov_b64 exec, 1")
        a.e(f"ds_write_b32 v{vU+4}, v{vU+1} offset:{QP}")
        a.e("s_mov_b64 exec, -1")

    for grp in range(NG):
        i0 = NG * 4 + grp * 4
        blk = grp // 4
        a.c(f"V group {grp}")
        flow(NG + grp)
        for t in range(4):
            onehot(vOH + 4 * t, vS + blk, bitrev4((grp % 4) * 4 + t))
        arrive(i0 + 3)
        flow_read(NG + grp)
        a.e("s_nop 1")
        for t in range(4):
            cs = "0" if (grp == 0 and t == 0) else vr(vACC, 4)
            a.e(f"v_mfma_f32_16x16x32_bf16 {vr(vACC,4)}, {vr(vOH+4*t,4)}, {vr(slot(i0+t),4)}, {cs}")
        st["consumed"] += 4
        if not args.DT:
            top_up(DSS)
        if grp == args.g_load:
            wave0(load_payload, "ldp")
        if grp == args.g_fin:
            wave0(finish_factor, "fin")
        if args.bar and (grp + 1) % args.bar == 0 and grp != NG - 1:
            a.e("s_barrier")

    assert wo_state["n"] == 20
    a.c("epilogue")
    stamp(5)
    a.e("s_nop 7")
    a.e("s_mov_b32 exec_hi, 0")
    a.e(f"ds_write_b128 v{vT0+1}, {vr(vACC,4)} offset:{OP}")
    a.e("s_mov_b64 exec, -1")
    a.e(f"v_lshrrev_b32 v{vT0+2}, 2, v{vC}")
    a.e(f"v_and_b32 v{vT0+3}, 3, v{vC}")
    a.e(f"v_lshl_add_u32 v{vT0+3}, v{vT0+3}, 2, v{vR}")
    a.e(f"s_lshl_b32 s{sT}, s{sWAVE}, 4")
    a.e(f"v_add_u32 v{vT0+3}, s{sT}, v{vT0+3}")
    a.e(f"v_lshlrev_b32 v{vT0+3}, 2, v{vT0+3}")
    a.e(f"v_lshl_add_u32 v{vT0+3}, v{vT0+2}, 10, v{vT0+3}")
    a.e(f"v_mov_b32 v{vU+4}, 0")
    a.e("s_waitcnt lgkmcnt(0)")
    a.e("s_barrier")
    a.e(f"ds_read2st64_b32 {vr(vU,2)}, v{vT0+3} offset0:{OP//256} offset1:{OP//256+2}")
    a.e(f"ds_read_b32 v{vU+2}, v{vU+4} offset:{QP}")
    assert OP % 256 == 0
    a.e(f"s_mul_i32 s{sT}, s{sWAVE}, 2560")
    a.e(f"v_add_u32 v{vT0+2}, s{sT}, v{vT0}")
    a.e("s_waitcnt lgkmcnt(0)")
    a.e(f"v_add_f32 v{vU}, v{vU}, v{vU+1}")
    for sh in (4, 8):
        a.e("s_nop 1")
        a.e(f"v_add_f32_dpp v{vU}, v{vU}, v{vU} row_ror:{sh} {DPPF}")
    a.e(f"v_mul_f32 v{vU}, v{vU}, v{vU+2}")
    a.e(f"v_cvt_pk_bf16_f32 v{vU}, v{vU}, v{vU}")
    a.e("s_nop 1")
    for rg in range(RG):
        onehot(vOH + 4 * rg, vU, rg)
    a.wait([("wo", i) for i in range(20)])
    a.e("s_nop 1")
    for rg in range(RG):
        for seg in range(5):
            cs = "0" if rg == 0 else vr(vY + 4 * seg, 4)
            a.e(f"v_mfma_f32_16x16x32_bf16 {vr(vY+4*seg,4)}, {vr(vOH+4*rg,4)}, {vr(vW+4*(rg*5+seg),4)}, {cs}")
    stamp(6)
    a.e("s_mov_b32 exec_hi, 0")
    a.e("s_nop 3")
    for seg in range(5):
        a.e(f"ds_write_b128 v{vT0+2}, {vr(vY+4*seg,4)} offset:{YP+seg*512}")
    a.e("s_mov_b64 exec, -1")
    a.e(f"s_lshl_b32 s{sT}, s{sWAVE}, 9")
    a.e(f"v_lshlrev_b32 v{vT0+2}, 2, v{vLANE}")
    a.e(f"v_add_u32 v{vT0+2}, s{sT}, v{vT0+2}")
    a.e("s_waitcnt lgkmcnt(0)")
    a.e("s_barrier")
    a.e(f"s_cmp_ge_u32 s{sWAVE}, 5")
    a.e("s_cbranch_scc1 L_end")
    assert YP % 256 == 0
    for w in range(W):
        a.e(f"ds_read2st64_b32 {vr(vW+2*w,2)}, v{vT0+2} offset0:{YP//256+w*10} offset1:{YP//256+w*10+1}")
    a.e(f"s_mul_i32 s{sT}, s{sGRP}, 2560")
    a.e("s_waitcnt lgkmcnt(0)")
    for w in range(1, W):
        a.e(f"v_add_f32 v{vW}, v{vW}, v{vW+2*w}")
        a.e(f"v_add_f32 v{vW+1}, v{vW+1}, v{vW+2*w+1}")
    a.e(f"buffer_atomic_add_f32 v{vW}, v{vT0+2}, {sr(sWS,4)}, s{sT} offen offset:{WS_ACC}")
    a.e(f"buffer_atomic_add_f32 v{vW+1}, v{vT0+2}, {sr(sWS,4)}, s{sT} offen offset:{WS_ACC+256}")
    a.e("s_waitcnt vmcnt(0)")
    a.e("s_barrier")
    a.e(f"s_cmp_lg_u32 s{sWAVE}, 0")
    a.e("s_cbranch_scc1 L_end")
    a.e(f"s_lshl_b32 s{sT+1}, s{sGRP}, 6")
    a.e(f"s_mov_b32 s{sREP}, 1")
    a.e(f"s_atomic_add s{sREP}, {sDB}, s{sT+1} glc")
    a.e("s_waitcnt lgkmcnt(0)")
    a.e(f"s_cmp_lg_u32 s{sREP}, 63")
    a.e("s_cbranch_scc1 L_end")
    a.e(f"v_lshlrev_b32 v{vU}, 3, v{vLANE}")
    for k in range(5):
        a.e(f"v_mov_b32 v{vW+2*k}, 0")
        a.e(f"v_mov_b32 v{vW+2*k+1}, 0")
    for k in range(5):
        a.e(f"buffer_atomic_or_x2 {vr(vW+2*k,2)}, v{vU}, {sr(sWS,4)}, s{sT} offen offset:{WS_ACC+512*k} sc0")
    a.e(f"s_mul_i32 s{sT+1}, s{sB}, 2560")
    a.e(f"s_mul_i32 s{sT+2}, s{sBLK}, 1280")
    a.e(f"s_add_u32 s{sT+1}, s{sT+1}, s{sT+2}")
    a.e(f"v_lshlrev_b32 v{vU+1}, 2, v{vLANE}")
    for k in range(5):
        a.e("s_waitcnt vmcnt(4)")
        a.e(f"v_cvt_pk_bf16_f32 v{vW+16+k}, v{vW+2*k}, v{vW+2*k+1}")
        a.e(f"buffer_store_dword v{vW+16+k}, v{vU+1}, {sr(sO,4)}, s{sT+1} offen offset:{256*k}")
    a.label("L_end")
    if inst:
        a.e("s_mov_b64 exec, -1")
        stamp(7)
        a.e(f"s_getreg_b32 s{sT+1}, hwreg(HW_REG_XCC_ID)")
        a.e(f"s_getreg_b32 s{sT+2}, hwreg(HW_REG_HW_ID)")
        a.e("s_waitcnt lgkmcnt(0)")
        a.e(f"v_mov_b32 v{vU}, 0")
        for k in range(8):
            a.e(f"v_writelane_b32 v{vU}, s{sST+2*k}, {k}")
        a.e(f"v_writelane_b32 v{vU}, s{sT+1}, 14")
        a.e(f"v_writelane_b32 v{vU}, s{sT+2}, 15")
        a.e(f"s_mul_i32 s{sT}, s{sWG}, {W}")
        a.e(f"s_add_u32 s{sT}, s{sT}, s{sWAVE}")
        a.e(f"s_lshl_b32 s{sT}, s{sT}, 6")
        a.e(f"s_add_u32 s{sT}, s{sT}, {WS_ST}")
        a.e(f"v_lshlrev_b32 v{vU+1}, 2, v{vLANE}")
        a.e("s_mov_b64 exec, 0xffff")
        a.e(f"buffer_store_dword v{vU}, v{vU+1}, {sr(sWS,4)}, s{sT} offen")
        if args.dbgt:
            a.e(f"s_cmp_lg_u32 s{sWAVE}, 0")
            a.e("s_cbranch_scc1 L_exit")
            a.e(f"s_not_b32 s{sT+1}, s{sST}")
            a.e(f"s_not_b32 s{sT+2}, s{sST+14}")
            a.e(f"v_mov_b32 v{vU+2}, 0")
            a.e(f"v_mov_b32 v{vU+3}, 0")
            items = [(1, sT+1), (2, sST+6), (3, sST+8), (12, sST+10), (13, sST+14), (14, sT+2), (15, sST+2)]
            for k, (dw, sreg) in enumerate(items):
                a.e(f"v_writelane_b32 v{vU+2}, s{sreg}, {k}")
                a.e(f"s_mov_b32 s{sT+3}, {dw*4}")
                a.e(f"v_writelane_b32 v{vU+3}, s{sT+3}, {k}")
            a.e("s_mov_b64 exec, 0x7f")
            a.e(f"buffer_atomic_umax v{vU+2}, v{vU+3}, {sr(sDBG,4)}, 0 offen")
    a.label("L_exit")
    a.e("s_endpgm")

    acc = (VGPRS + 3) // 4 * 4
    a.raw('.section .rodata,"a"')
    a.raw(".p2align 6")
    a.raw(f""".amdhsa_kernel {KNAME}
  .amdhsa_next_free_vgpr {VGPRS}
  .amdhsa_next_free_sgpr {SGPRS}
  .amdhsa_accum_offset {acc}
  .amdhsa_group_segment_fixed_size 0
  .amdhsa_kernarg_size 104
  .amdhsa_user_sgpr_count 2
  .amdhsa_user_sgpr_kernarg_segment_ptr 1
  .amdhsa_system_sgpr_workgroup_id_x 1
  .amdhsa_float_denorm_mode_32 3
.end_amdhsa_kernel
""")
    return a.text()


if __name__ == "__main__":
    ap = argparse.ArgumentParser()
    ap.add_argument("-o", default=f"cdna_kernels/{NAME}.s")
    ap.add_argument("--NP", type=int, default=28)
    ap.add_argument("--D", type=int, default=6)
    ap.add_argument("--lr", type=int, default=2)
    ap.add_argument("--pat", default="0123568974+44")
    ap.add_argument("--bar", type=int, default=4)
    ap.add_argument("--hbar", type=int, default=1)
    ap.add_argument("--wo0", type=int, default=0)
    ap.add_argument("--wo1", type=int, default=0)
    ap.add_argument("--wog", type=int, default=2)
    ap.add_argument("--head", default="QKQKQKQKQK")
    ap.add_argument("--head2", default="KK")
    ap.add_argument("--K0", type=int, default=8)
    ap.add_argument("--K1", type=int, default=16)
    ap.add_argument("--g_set", type=int, default=1)
    ap.add_argument("--g_load", type=int, default=12)
    ap.add_argument("--g_check", type=int, default=12)
    ap.add_argument("--inst", type=int, default=0)
    ap.add_argument("--DT", type=int, default=4)
    ap.add_argument("--fc", type=int, default=0)
    ap.add_argument("--DS", type=int, default=3)
    ap.add_argument("--theta", type=int, default=24)
    ap.add_argument("--fg0", type=int, default=8)
    ap.add_argument("--fg1", type=int, default=28)
    ap.add_argument("--fp", type=int, default=2)
    ap.add_argument("--g_fin", type=int, default=14)
    ap.add_argument("--g_zset", type=int, default=3)
    ap.add_argument("--g_zld", type=int, default=13)
    ap.add_argument("--boost", type=int, default=0)
    ap.add_argument("--b0", type=int, default=36)
    ap.add_argument("--b1", type=int, default=56)
    ap.add_argument("--rot", type=int, default=0)
    ap.add_argument("--cu", type=int, default=1)
    ap.add_argument("--Dh", type=int, default=0)
    ap.add_argument("--wot", type=int, default=2)
    ap.add_argument("--noq", type=int, default=0)
    ap.add_argument("--noo", type=int, default=0)
    ap.add_argument("--nosync", type=int, default=0)
    ap.add_argument("--dbgt", type=int, default=0)
    args = ap.parse_args()
    open(args.o, "w").write(gen(args))
```

```python
import sys, math, struct, argparse

NAME = "concat_heads__gqa_block_cached__gqa_block_cached__decode"
KNAME = NAME + "_kernel"


def f32bits(x):
    return struct.unpack("<I", struct.pack("<f", x))[0]


def bitrev4(t):
    return ((t & 1) << 3) | ((t & 2) << 1) | ((t & 4) >> 1) | ((t & 8) >> 3)


class Asm:
    def __init__(self):
        self.lines = []
        self.vm = []
        self.nlabel = 0

    def e(self, s):
        self.lines.append("    " + s)

    def c(self, s):
        self.lines.append("    ; " + s)

    def label(self, s):
        self.lines.append(s + ":")

    def newlabel(self, base):
        self.nlabel += 1
        return f"L_{base}_{self.nlabel}"

    def raw(self, s):
        self.lines.append(s)

    def vmem(self, s, tag):
        self.e(s)
        self.vm.append(tag)
        assert len(self.vm) <= 58, "too many outstanding vmem ops"

    def mark(self, tag):
        self.vm.append(("mark", tag))

    def count_after(self, tag):
        idx = max(i for i, t in enumerate(self.vm) if t == tag)
        return sum(1 for t in self.vm[idx + 1:] if not (isinstance(t, tuple) and t[0] == "mark"))

    def wait(self, tags):
        if not isinstance(tags, (list, set)):
            tags = [tags]
        last = -1
        for i, t in enumerate(self.vm):
            if t in tags:
                last = i
        if last < 0:
            return
        n = sum(1 for t in self.vm[last + 1:] if not (isinstance(t, tuple) and t[0] == "mark"))
        self.e(f"s_waitcnt vmcnt({n})")
        self.vm = self.vm[last + 1:]

    def limit(self, n):
        real = [i for i, t in enumerate(self.vm) if not (isinstance(t, tuple) and t[0] == "mark")]
        if len(real) <= n:
            return
        last = real[len(real) - n - 1]
        self.e(f"s_waitcnt vmcnt({n})")
        self.vm = self.vm[last + 1:]

    def text(self):
        return "\n".join(self.lines) + "\n"


def vr(a, n=1):
    return f"v{a}" if n == 1 else f"v[{a}:{a+n-1}]"


def sr(a, n=1):
    return f"s{a}" if n == 1 else f"s[{a}:{a+n-1}]"


def finalize(text, args):
    import re
    pol = args.pol
    assert len(pol) == 8

    def sub(body, p4):
        for ch, c in zip("KVQO", p4):
            body = body.replace("@H" + ch, " nt" if c == "n" else "")
        return body
    if pol[:4] == pol[4:]:
        return sub(text, pol[:4])
    k0 = text.index("    s_cbranch_scc1 L_exit\n") + len("    s_cbranch_scc1 L_exit\n")
    k1 = text.index("L_exit:\n")
    head, body, tail = text[:k0], text[k0:k1], text[k1:]
    bit = {0: 2, 1: 5, 2: 7}[args.map]
    ren = lambda b, sfx: re.sub(r"\bL_(?!exit)(\w+)", lambda m: "L_" + m.group(1) + sfx, b)
    out = head + f"    s_bitcmp1_b32 s2, {bit}\n    s_cbranch_scc1 L_bodyB\n"
    out += ren(sub(body, pol[:4]), "_a") + "    s_endpgm\nL_bodyB:\n" + ren(sub(body, pol[4:]), "_b") + tail
    return out


def gen(args):
    a = Asm()
    W = 8
    NP = args.NP
    DSS = args.D
    inst = args.inst
    hint = (" " + args.wh) if args.wh else ""
    khint = (" " + args.kh) if args.kh else ""
    NG = 16
    NB = 4
    NWQ = 20
    RG = 4
    CSCALE = (128 ** -0.5) * math.log2(math.e)
    LR = args.lr

    QP = 0
    QF = QP + W * 512
    MX = QF + W * 256
    LS = MX + 64
    FF = LS + 64
    OP = MX + 256
    YP = OP + W * 512
    MODEA = YP + W * 2560
    LDS_BYTES = MODEA + 64

    WS_ACC = 0
    WS_LSE = 65536
    WS_ST = 4 * 1024 * 1024
    DBG_FLAG = 16
    DBG_ZERO = 80

    vTID, vLANE, vC, vR, vKOFF, vWQOFF, vWOOFF, vXOFF, vX0, vX1 = range(10)
    vT0 = 10
    vKOFF2 = 15
    vZ = 14
    vMODE = 55
    vQ = 16
    vMASK = 20
    vACC = 24
    vS = 28
    vOH = 32
    vT = vOH
    vR2 = vOH + 4
    vU = 48
    vBUF = 56
    vW = vBUF + NP * 4
    vY = vBUF
    VGPRS = vW + NWQ * 4
    assert VGPRS <= 256, VGPRS
    vLSE = vX0
    vFLG = vX1
    vPAY = vXOFF
    vMC = vWQOFF

    sWG = 2
    sKA = 4
    sP = 8
    sOUT = 20
    sBLK, sH, sB, sSPLIT, sWAVE, sIDX = 26, 27, 28, 29, 30, 31
    sK, sV, sWQ, sWO, sX, sWS = 32, 36, 40, 44, 48, 52
    sOFF = 56
    sT = 57
    sM1, sM0 = 64, 66
    sCS = 68
    sGRP = 69
    sOK = 70
    sQO = 71
    sDBG = 72
    sO = 76
    sLSE, sPAY, sFLG, sZF, sREP, sFO, sZO, sSHO = 6, 7, 18, 19, 3, 62, 63, 61
    sXO, sKO = 72, 73
    sST = 80
    SGPRS = 80 if not inst else 100

    def stamp(k):
        if inst:
            a.e(f"s_memrealtime s[{sST+2*k}:{sST+2*k+1}]")

    DPPF = "row_mask:0xf bank_mask:0xf"

    a.raw("; generated by gen/gen4.py (fused decode attention: q-proj + flash-decoding + out-proj)")
    a.raw(f"; @launch grid=(256,1,1) block=({W*64},1,1) lds={LDS_BYTES}")
    a.raw('.amdgcn_target "amdgcn-amd-amdhsa--gfx950"')
    a.raw(".text")
    a.raw(f".globl {KNAME}")
    a.raw(".p2align 8")
    a.raw(f".type {KNAME},@function")
    a.label(KNAME)
    a.e(f"s_cmp_ge_u32 s{sWG}, 256")
    a.e("s_cbranch_scc1 L_exit")
    stamp(0)
    a.e(f"s_and_b32 s{sT}, s{sWG}, 7")
    if args.map == 0:
        a.e(f"s_lshr_b32 s{sBLK}, s{sT}, 2")
    elif args.map == 1:
        a.e(f"s_bfe_u32 s{sBLK}, s{sWG}, 0x10005")
    else:
        a.e(f"s_lshr_b32 s{sBLK}, s{sWG}, 7")
    a.e(f"s_mul_i32 s{sT+3}, s{sBLK}, 40")
    a.e(f"s_add_u32 s{sKA}, s0, s{sT+3}")
    a.e(f"s_addc_u32 s{sKA+1}, s1, 0")
    a.e(f"s_load_dwordx8 {sr(sP,8)}, {sr(sKA,2)}, 0")
    a.e(f"s_load_dwordx2 {sr(sP+8,2)}, {sr(sKA,2)}, 32")
    a.e(f"s_load_dwordx4 {sr(sOUT,4)}, s[0:1], 80")
    a.e(f"s_load_dwordx2 {sr(sOUT+4,2)}, s[0:1], 96")
    a.e(f"s_lshr_b32 s{sT+1}, s{sWG}, 3")
    if args.map == 0:
        a.e(f"s_lshl_b32 s{sT}, s{sT}, 3")
        a.e(f"s_lshr_b32 s{sT+2}, s{sT+1}, 2")
        a.e(f"s_add_u32 s{sT}, s{sT}, s{sT+2}")
        a.e(f"s_and_b32 s{sH}, s{sT}, 31")
    elif args.map == 1:
        a.e(f"s_lshl_b32 s{sT}, s{sT}, 2")
        a.e(f"s_lshr_b32 s{sT+2}, s{sT+1}, 3")
        a.e(f"s_add_u32 s{sH}, s{sT}, s{sT+2}")
    else:
        a.e(f"s_lshl_b32 s{sT}, s{sT}, 2")
        a.e(f"s_bfe_u32 s{sT+2}, s{sT+1}, 0x20002")
        a.e(f"s_add_u32 s{sH}, s{sT}, s{sT+2}")
    a.e(f"s_lshr_b32 s{sB}, s{sT+1}, 1")
    a.e(f"s_and_b32 s{sB}, s{sB}, 1")
    a.e(f"s_and_b32 s{sSPLIT}, s{sT+1}, 1")
    a.e(f"v_and_b32 v{vLANE}, 63, v{vTID}")
    a.e(f"v_lshrrev_b32 v{vT0}, 6, v{vTID}")
    a.e(f"v_and_b32 v{vC}, 15, v{vTID}")
    a.e(f"v_readfirstlane_b32 s{sWAVE}, v{vT0}")
    a.e(f"v_lshrrev_b32 v{vR}, 4, v{vLANE}")
    a.e(f"s_lshl_b32 s{sGRP}, s{sBLK}, 1")
    a.e(f"s_add_u32 s{sGRP}, s{sGRP}, s{sB}")
    a.e(f"s_lshl_b32 s{sIDX}, s{sGRP}, 5")
    a.e(f"s_add_u32 s{sIDX}, s{sIDX}, s{sH}")
    a.e(f"s_lshl_b32 s{sIDX}, s{sIDX}, 1")
    a.e(f"s_add_u32 s{sIDX}, s{sIDX}, s{sSPLIT}")
    PT = [int(ch) for ch in args.pat[:10]]
    assert sorted(PT) == list(range(10))
    COL = [0] * 10
    for k, src in enumerate([0, 1, 6, 7, 8, 2, 3, 4, 5, 9]):
        COL[src] = 1 << PT[k]
    r = args.pat[10:]
    while r:
        assert r[0] == "+"
        COL[int(r[1])] ^= 1 << int(r[2])
        r = r[3:]
    WSMASK = COL[6] | COL[7] | COL[8] | COL[9]
    a.e(f"v_lshlrev_b32 v{vKOFF}, 4, v{vLANE}")
    a.e(f"s_mul_i32 s{sT}, s{sSPLIT}, {COL[9] << 10}")
    for k in range(3):
        a.e(f"s_bfe_u32 s{sT+1}, s{sWAVE}, 0x{(1<<16)|k:x}")
        a.e(f"s_mul_i32 s{sT+1}, s{sT+1}, {COL[6+k] << 10}")
        a.e(f"s_xor_b32 s{sT}, s{sT}, s{sT+1}")
    XM = int(args.xm, 16)
    if XM:
        a.e(f"s_mov_b32 s{sXO}, 0")
        srcs = [(sSPLIT, 0), (sB, 0)] + [(sH, k) for k in range(5)] + [(sBLK, 0)]
        for k, (reg, bit) in enumerate(srcs):
            nib = (XM >> (4 * k)) & 15
            if not nib:
                continue
            cst = 0
            for j in range(4):
                if (nib >> j) & 1:
                    cst ^= COL[2 + j]
            assert cst & 3 == 0
            a.e(f"s_bitcmp1_b32 s{reg}, {bit}")
            a.e(f"s_cselect_b32 s{sT+1}, {cst << 10}, 0")
            a.e(f"s_xor_b32 s{sXO}, s{sXO}, s{sT+1}")
        a.e(f"s_and_b32 s{sT+1}, s{sXO}, {WSMASK << 10}")
        a.e(f"s_xor_b32 s{sT}, s{sT}, s{sT+1}")
        a.e(f"s_andn2_b32 s{sXO}, s{sXO}, {WSMASK << 10}")
    a.e(f"v_add_u32 v{vKOFF}, s{sT}, v{vKOFF}")

    def tile_T(t):
        T = 0
        for k in range(6):
            if (t >> k) & 1:
                T ^= COL[k]
        return T
    OVL = sorted(set(tile_T(t) & WSMASK for t in range(64)))
    assert len(OVL) <= 2
    KOFFREG = {0: vKOFF}
    if len(OVL) == 2:
        KOFFREG[OVL[1]] = vKOFF2
        a.e(f"v_xor_b32 v{vKOFF2}, {OVL[1] << 10}, v{vKOFF}")
    a.e(f"s_mul_i32 s{sT}, s{sWAVE}, {NWQ*4}")
    a.e(f"v_add_u32 v{vWQOFF}, s{sT}, v{vR}")
    a.e(f"v_lshlrev_b32 v{vWQOFF}, 13, v{vWQOFF}")
    a.e(f"v_lshl_add_u32 v{vWQOFF}, v{vC}, 4, v{vWQOFF}")
    if args.rot:
        a.e(f"s_lshl_b32 s{sQO}, s{sB}, 1")
        a.e(f"s_add_u32 s{sQO}, s{sQO}, s{sSPLIT}")
        a.e(f"s_mul_i32 s{sQO}, s{sQO}, 5")
        for reg, add in ((vXOFF, 0), (vX1, 16)):
            a.e(f"v_add_u32 v{reg}, s{sQO}, v{vC}")
            if add:
                a.e(f"v_add_u32 v{reg}, {add}, v{reg}")
            for _ in range(2 if add else 1):
                a.e(f"v_subrev_u32 v{vT0}, 20, v{reg}")
                a.e(f"v_min_u32 v{reg}, v{reg}, v{vT0}")
            a.e(f"v_lshl_add_u32 v{reg}, v{reg}, 2, v{vR}")
            a.e(f"v_add_u32 v{reg}, s{sT}, v{reg}")
            a.e(f"v_lshlrev_b32 v{reg}, 1, v{reg}")
        a.e(f"s_lshl_b32 s{sQO}, s{sQO}, 15")
    else:
        a.e(f"v_lshl_add_u32 v{vXOFF}, v{vC}, 2, v{vR}")
        a.e(f"v_add_u32 v{vXOFF}, s{sT}, v{vXOFF}")
        a.e(f"v_lshlrev_b32 v{vXOFF}, 1, v{vXOFF}")
        a.e(f"v_add_u32 v{vX1}, 128, v{vXOFF}")
    a.e(f"s_mul_i32 s{sT}, s{sWAVE}, {RG*4}")
    a.e(f"v_add_u32 v{vWOOFF}, s{sT}, v{vR}")
    a.e(f"v_mul_u32_u24 v{vWOOFF}, 1280, v{vWOOFF}")
    a.e(f"v_lshl_add_u32 v{vWOOFF}, v{vC}, 4, v{vWOOFF}")
    a.e("s_waitcnt lgkmcnt(0)")
    stamp(1)
    a.e(f"s_mul_i32 s{sT}, s{sB}, 1280")
    a.e(f"s_add_u32 s{sX}, s{sP}, s{sT}")
    a.e(f"s_addc_u32 s{sX+1}, s{sP+1}, 0")
    a.e(f"s_mov_b32 s{sX+2}, 1280")
    a.e(f"s_mov_b32 s{sX+3}, 0x20000")
    a.e(f"s_lshl_b32 s{sT}, s{sH}, 8")
    a.e(f"s_add_u32 s{sWQ}, s{sP+6}, s{sT}")
    a.e(f"s_addc_u32 s{sWQ+1}, s{sP+7}, 0")
    a.e(f"s_sub_u32 s{sWQ+2}, {640*8192}, s{sT}")
    a.e(f"s_mov_b32 s{sWQ+3}, 0x20000")

    stream = [("K", t) for t in range(NG * 4)] + [("V", t) for t in range(NG * 4)]
    st = {"issued": 0, "consumed": 0, "soff": None}

    def set_soff(v):
        if v == 0:
            return "0"
        if st["soff"] != v:
            a.e(f"s_mov_b32 s{sOFF}, {v}")
            st["soff"] = v
        return f"s{sOFF}"

    def slot(i):
        return vBUF + (i % NP) * 4

    def issue_one(lim=0):
        if lim:
            a.limit(lim - 1)
        i = st["issued"]
        kind, t = stream[i]
        buf = slot(i)
        if True:
            srd = sK if kind == "K" else sV
            T = tile_T(t)
            koff = KOFFREG[T & WSMASK]
            off = (T & ~WSMASK) << 10
            imm = off % 4096
            if XM:
                if st.get("koff") != off - imm:
                    a.e(f"s_xor_b32 s{sKO}, s{sXO}, {off - imm}")
                    st["koff"] = off - imm
                sos = f"s{sKO}"
            else:
                sos = set_soff(off - imm)
            immS = f" offset:{imm}" if imm else ""
            a.vmem(f"buffer_load_dwordx4 {vr(buf,4)}, v{koff}, {sr(srd,4)}, {sos} offen{immS}@H{kind}", ("S", i))
        st["issued"] = i + 1

    def top_up(limit):
        limit = min(limit, NP)
        while st["issued"] < len(stream) and st["issued"] - st["consumed"] < limit:
            issue_one()

    def arrive(i_last):
        if not args.DT:
            a.wait(("S", i_last))
            return
        def one():
            if wo_state["n"] < 20 and args.wot and st["issued"] % args.wot == 0 and qst["done"] == 5:
                issue_wo(1)
            issue_one()
        if st["issued"] - (i_last + 1) >= args.DT:
            n = args.cu if st.get("primed") else args.DT
            for _ in range(n):
                if st["issued"] < len(stream) and st["issued"] - st["consumed"] < NP:
                    a.limit(args.DT - 1)
                    one()
                    st["primed"] = True
            a.wait(("S", i_last))
            return
        for i in range(i_last - 3, i_last + 1):
            a.wait(("S", i))
            while st["issued"] < len(stream) and st["issued"] - (i + 1) < args.DT and st["issued"] - st["consumed"] < NP:
                if args.fc and fcs["on"] and len(a.vm) > args.DS - 1:
                    l = a.newlabel("sh")
                    a.e(f"s_cbranch_vccnz {l}")
                    a.e(f"s_waitcnt vmcnt({args.DS - 1})")
                    a.label(l)
                one()

    fcs = {"on": False, "k": 0, "pend": None, "rd": False}

    def flow(G):
        if not args.fc:
            return
        if fcs["rd"]:
            a.e("s_waitcnt lgkmcnt(0)")
            a.e(f"v_readfirstlane_b32 s{sT}, v{vMODE}")
            a.e("s_nop 3")
            a.e(f"s_cmp_lg_u32 s{sT}, 0")
            a.e("s_cselect_b64 vcc, -1, 0")
            fcs["on"] = True
            fcs["rd"] = False
        if fcs["pend"] is not None:
            k = fcs["pend"]
            def wr():
                a.e("s_waitcnt lgkmcnt(0)")
                a.e(f"s_cmp_ge_u32 s{sREP}, {64*k + args.theta}")
                a.e(f"s_cselect_b32 s{sT}, 1, 0")
                a.e(f"v_mov_b32 v{vMODE}, s{sT}")
                a.e(f"ds_write_b32 v{vZ}, v{vMODE} offset:{MODEA}")
            wave0(wr, "fw")
            fcs["pend"] = None
        if G >= args.fg0 and G <= args.fg1 and (G - args.fg0) % args.fp == 0:
            def rep():
                a.e(f"s_mov_b32 s{sREP}, 1")
                a.e(f"s_atomic_add s{sREP}, {sr(sOUT+2,2)}, s{sSHO} glc")
            wave0(rep, "fr")
            fcs["pend"] = fcs["k"]
            fcs["k"] += 1

    def flow_read(G):
        if args.fc and G > args.fg0 and G < 31:
            a.e(f"ds_read_b32 v{vMODE}, v{vZ} offset:{MODEA}")
            fcs["rd"] = True

    def wave0(fn, nm):
        if args.nosync:
            return
        l = a.newlabel(nm)
        a.e(f"s_cmp_lg_u32 s{sWAVE}, 0")
        a.e(f"s_cbranch_scc1 {l}")
        fn()
        a.label(l)

    a.vmem(f"buffer_load_ushort v{vX0}, v{vXOFF}, {sr(sX,4)}, 0 offen nt", "x")
    a.vmem(f"buffer_load_ushort v{vX1}, v{vX1}, {sr(sX,4)}, 0 offen nt", "x")
    a.e(f"s_bfe_u32 s{sT}, s{sIDX}, 0x60001")
    a.e(f"s_lshl_b32 s{sT}, s{sT}, 20")
    a.e(f"s_add_u32 s{sK}, s{sP+2}, s{sT}")
    a.e(f"s_addc_u32 s{sK+1}, s{sP+3}, 0")
    a.e(f"s_mov_b32 s{sK+2}, {1024*1024}")
    a.e(f"s_mov_b32 s{sK+3}, 0x20000")
    a.e(f"s_add_u32 s{sV}, s{sP+4}, s{sT}")
    a.e(f"s_addc_u32 s{sV+1}, s{sP+5}, 0")
    a.e(f"s_mov_b32 s{sV+2}, {1024*1024}")
    a.e(f"s_mov_b32 s{sV+3}, 0x20000")
    a.e(f"s_mul_i32 s{sT}, s{sH}, {128*1280}")
    a.e(f"s_add_u32 s{sWO}, s{sP+8}, s{sT}")
    a.e(f"s_addc_u32 s{sWO+1}, s{sP+9}, 0")
    a.e(f"s_mov_b32 s{sWO+2}, {128*1280}")
    a.e(f"s_mov_b32 s{sWO+3}, 0x20000")
    a.e(f"s_mov_b32 s{sWS}, s{sOUT+4}")
    a.e(f"s_mov_b32 s{sWS+1}, s{sOUT+5}")
    a.e(f"s_mov_b32 s{sWS+2}, {8*1024*1024}")
    a.e(f"s_mov_b32 s{sWS+3}, 0x20000")
    a.e(f"s_mov_b32 s{sO}, s{sOUT}")
    a.e(f"s_mov_b32 s{sO+1}, s{sOUT+1}")
    a.e(f"s_mov_b32 s{sO+2}, 5120")
    a.e(f"s_mov_b32 s{sO+3}, 0x20000")
    wo_state = {"n": 0}

    def issue_wo(n):
        for _ in range(n):
            k = wo_state["n"]
            if k >= 20:
                return
            rg, seg = divmod(k, 5)
            sos = set_soff(rg * 5120)
            immS = f" offset:{seg*256}" if seg else ""
            if not args.noo: a.vmem(f"buffer_load_dwordx4 {vr(vW+4*k,4)}, v{vWOOFF}, {sr(sWO,4)}, {sos} offen{immS}@HO", ("wo", k))
            wo_state["n"] = k + 1

    qst = {"issued": 0, "done": 0, "prep": False}

    def issue_q(n=4):
        for _ in range(n):
            t = qst["issued"]
            if args.Dh:
                a.limit(args.Dh - 1)
            sos = f"s{sQO}" if args.rot else set_soff(t * 32768)
            if not args.noq: a.vmem(f"buffer_load_dwordx4 {vr(vW+4*t,4)}, v{vWQOFF}, {sr(sWQ,4)}, {sos} offen@HQ", ("Q", t))
            if args.rot and t < 19:
                a.e(f"s_add_u32 s{sQO}, s{sQO}, 32768")
                if t % 5 == 4:
                    a.e(f"s_cmp_eq_u32 s{sQO}, {20*32768}")
                    a.e(f"s_cselect_b32 s{sQO}, 0, s{sQO}")
            qst["issued"] += 1

    def onehot(dst, src, lane):
        for j in range(4):
            a.e(f"v_and_b32_dpp v{dst+j}, v{src}, v{vMASK+j} row_newbcast:{lane} {DPPF}")

    def consume_q():
        if not qst["prep"]:
            prep()
            a.wait("x")
            a.e(f"v_lshl_or_b32 v{vX0}, v{vX0}, 16, v{vX0}")
            a.e(f"v_lshl_or_b32 v{vX1}, v{vX1}, 16, v{vX1}")
            a.e("s_nop 1")
            qst["prep"] = True
        g0 = qst["done"] * 4
        for t in range(4):
            i = g0 + t
            onehot(vOH + 4 * t, vX0 if i < 16 else vX1, i % 16)
        a.wait(("Q", g0 + 3))
        a.e("s_nop 1")
        for t in range(4):
            i = g0 + t
            cs = "0" if i == 0 else vr(vACC, 4)
            a.e(f"v_mfma_f32_16x16x32_bf16 {vr(vACC,4)}, {vr(vOH+4*t,4)}, {vr(vW+4*i,4)}, {cs}")
        qst["done"] += 1

    def run_seq(seq):
        for ch in seq:
            if ch == "Q":
                issue_q()
            elif ch == "K":
                for _ in range(4):
                    issue_one(args.Dh)
                assert st["issued"] - st["consumed"] <= NP
            elif ch == "k":
                for _ in range(2):
                    issue_one(args.Dh)
                assert st["issued"] - st["consumed"] <= NP
            elif ch == "q":
                issue_q(1)
            elif ch == "x":
                issue_one(args.Dh)
                assert st["issued"] - st["consumed"] <= NP
            elif ch == "B":
                a.e("s_barrier")
            elif ch == "M":
                consume_q()
            elif ch == "O":
                assert wo_state["n"] + 4 <= qst["done"] * 4
                issue_wo(4)
            else:
                raise ValueError(ch)

    def prep():
        lz = a.newlabel("nozero")
        a.e(f"s_and_b32 s{sT}, s{sIDX}, 63")
        a.e(f"s_cmp_lg_u32 s{sT}, 0")
        a.e(f"s_cbranch_scc1 {lz}")
        a.e(f"s_cmp_lg_u32 s{sWAVE}, 0")
        a.e(f"s_cbranch_scc1 {lz}")
        for k in range(4):
            a.e(f"v_mov_b32 v{vU+k}, 0")
        a.e(f"v_lshlrev_b32 v{vU+4}, 4, v{vLANE}")
        a.e(f"s_mul_i32 s{sT}, s{sGRP}, 2560")
        a.e(f"buffer_store_dwordx4 {vr(vU,4)}, v{vU+4}, {sr(sWS,4)}, s{sT} offen offset:{WS_ACC} sc1")
        a.e(f"buffer_store_dwordx4 {vr(vU,4)}, v{vU+4}, {sr(sWS,4)}, s{sT} offen offset:{WS_ACC+1024} sc1")
        a.e("s_mov_b32 exec_hi, 0")
        a.e(f"buffer_store_dwordx4 {vr(vU,4)}, v{vU+4}, {sr(sWS,4)}, s{sT} offen offset:{WS_ACC+2048} sc1")
        a.e("s_mov_b64 exec, -1")
        a.e(f"v_lshlrev_b32 v{vU+4}, 7, v{vLANE}")
        a.e(f"s_lshl_b32 s{sT}, s{sGRP}, 13")
        a.e(f"s_add_u32 s{sT}, s{sT}, {WS_LSE}")
        a.e(f"buffer_store_dword v{vU}, v{vU+4}, {sr(sWS,4)}, s{sT} offen sc1")
        a.label(lz)
        a.mark("zst")
        a.e(f"v_and_b32 v{vT0}, 1, v{vC}")
        a.e(f"v_lshlrev_b32 v{vT0}, 4, v{vT0}")
        a.e(f"v_mov_b32 v{vT0+1}, 0xffff")
        a.e(f"v_lshlrev_b32 v{vT0+1}, v{vT0}, v{vT0+1}")
        a.e(f"v_lshrrev_b32 v{vT0+2}, 1, v{vC}")
        for j in range(4):
            a.e(f"v_cmp_eq_u32 vcc, {j}, v{vT0+2}")
            a.e("s_nop 1")
            a.e(f"v_cndmask_b32 v{vMASK+j}, 0, v{vT0+1}, vcc")
        a.e(f"s_mov_b32 s{sM1}, 0xcccccccc")
        a.e(f"s_mov_b32 s{sM1+1}, 0xcccccccc")
        a.e(f"s_mov_b32 s{sM0}, 0xaaaaaaaa")
        a.e(f"s_mov_b32 s{sM0+1}, 0xaaaaaaaa")
        a.e(f"s_mov_b32 s{sCS}, 0x{f32bits(CSCALE):08x}")
        a.e(f"v_lshlrev_b32 v{vT0}, 5, v{vC}")
        a.e(f"v_lshl_add_u32 v{vT0}, v{vR}, 4, v{vT0}")
        a.e(f"s_lshl_b32 s{sT}, s{sWAVE}, 9")
        a.e(f"v_add_u32 v{vT0+1}, s{sT}, v{vT0}")
        a.e(f"s_lshl_b32 s{sZO}, s{sGRP}, 6")
        a.e(f"s_lshl_b32 s{sFO}, s{sIDX}, 7")
        a.e(f"s_add_u32 s{sFO}, s{sFO}, {WS_LSE}")
        a.e(f"s_add_u32 s{sZO}, s{sZO}, 8")
        a.e(f"s_lshl_b32 s{sSHO}, s{sB}, 1")
        a.e(f"s_add_u32 s{sSHO}, s{sSHO}, s{sSPLIT}")
        a.e(f"s_lshl_b32 s{sSHO}, s{sSHO}, 6")
        a.e(f"s_add_u32 s{sSHO}, s{sSHO}, 4")
        a.e(f"s_mov_b32 s{sOK}, 0")
        a.e("s_mov_b64 vcc, -1")
        if args.fc:
            a.e(f"v_mov_b32 v{vZ}, 0")
            a.e(f"v_mov_b32 v{vMODE}, 1")
            a.e(f"ds_write_b32 v{vZ}, v{vMODE} offset:{MODEA}")

    run_seq(args.head)
    assert qst["issued"] == 20
    while qst["done"] < 5:
        consume_q()
    stamp(2)
    a.e("s_nop 7")
    a.e("s_mov_b32 exec_hi, 0")
    a.e(f"ds_write_b128 v{vT0+1}, {vr(vACC,4)} offset:{QP}")
    a.e("s_mov_b64 exec, -1")
    run_seq(args.head2)
    a.e(f"v_lshlrev_b32 v{vT0+2}, 3, v{vLANE}")
    a.e("s_waitcnt lgkmcnt(0)")
    a.e("s_barrier")
    for w in range(W):
        a.e(f"ds_read_b64 {vr(vOH+2*w,2)}, v{vT0+2} offset:{QP+w*512}")
    a.e(f"s_lshl_b32 s{sT}, s{sWAVE}, 8")
    a.e(f"v_lshlrev_b32 v{vT0+2}, 2, v{vLANE}")
    a.e(f"v_add_u32 v{vT0+2}, s{sT}, v{vT0+2}")
    a.e(f"v_lshlrev_b32 v{vT0+3}, 4, v{vC}")
    a.e(f"v_add_u32 v{vT0+3}, s{sT}, v{vT0+3}")
    a.e("s_waitcnt lgkmcnt(0)")
    for k in range(1, W):
        a.e(f"v_add_f32 v{vOH}, v{vOH}, v{vOH+2*k}")
        a.e(f"v_add_f32 v{vOH+1}, v{vOH+1}, v{vOH+2*k+1}")
    a.e(f"v_cvt_pk_bf16_f32 v{vU}, v{vOH}, v{vOH+1}")
    a.e(f"ds_write_b32 v{vT0+2}, v{vU} offset:{QF}")
    a.e("s_waitcnt lgkmcnt(0)")
    a.e(f"ds_read_b128 {vr(vQ,4)}, v{vT0+3} offset:{QF}")
    a.e("s_waitcnt lgkmcnt(0)")
    stamp(3)

    for grp in range(NG):
        i0 = grp * 4
        a.c(f"K group {grp}")
        flow(grp)
        arrive(i0 + 3)
        flow_read(grp)
        if grp == args.g_zset:
            def zset():
                l = a.newlabel("nz")
                a.e(f"s_and_b32 s{sT}, s{sIDX}, 63")
                a.e(f"s_cmp_lg_u32 s{sT}, 0")
                a.e(f"s_cbranch_scc1 {l}")
                a.e(f"s_mov_b32 s{sZF}, 1")
                a.e(f"s_atomic_or s{sZF}, {sr(sOUT+2,2)}, s{sZO} glc")
                a.label(l)
            assert ("mark", "zst") not in a.vm
            wave0(zset, "zs")
        if grp == args.g_zld:
            def zld():
                a.e("s_waitcnt lgkmcnt(0)")
                a.e(f"s_load_dword s{sZF}, {sr(sOUT+2,2)}, s{sZO} glc")
            wave0(zld, "zl")
        for j in range(4):
            for t in range(4):
                cs = "0" if j == 0 else f"v{vT+t}"
                a.e(f"v_dot2_f32_bf16 v{vT+t}, v{slot(i0+t)+j}, v{vQ+j}, {cs}")
        st["consumed"] += 4
        if not args.DT:
            issue_wo(args.wog)
            top_up(DSS)
        a.e("s_nop 2")
        a.e(f"v_add_f32_dpp v{vT}, v{vT}, v{vT} row_ror:8 row_mask:0xf bank_mask:0x3")
        a.e(f"v_add_f32_dpp v{vT+2}, v{vT+2}, v{vT+2} row_ror:8 row_mask:0xf bank_mask:0x3")
        a.e(f"v_add_f32_dpp v{vT}, v{vT+1}, v{vT+1} row_ror:8 row_mask:0xf bank_mask:0xc")
        a.e(f"v_add_f32_dpp v{vT+2}, v{vT+3}, v{vT+3} row_ror:8 row_mask:0xf bank_mask:0xc")
        a.e("s_nop 1")
        gq = grp % 4
        a.e(f"v_add_f32_dpp v{vR2+gq}, v{vT}, v{vT} row_half_mirror row_mask:0xf bank_mask:0x5")
        a.e(f"v_add_f32_dpp v{vR2+gq}, v{vT+2}, v{vT+2} row_half_mirror row_mask:0xf bank_mask:0xa")
        if gq == 3:
            blk = grp // 4
            a.e("s_nop 1")
            for k in range(4):
                a.e(f"v_add_f32_dpp v{vR2+k}, v{vR2+k}, v{vR2+k} quad_perm:[2,3,0,1] {DPPF}")
            a.e(f"v_cndmask_b32 v{vR2}, v{vR2}, v{vR2+1}, {sr(sM1,2)}")
            a.e(f"v_cndmask_b32 v{vR2+2}, v{vR2+2}, v{vR2+3}, {sr(sM1,2)}")
            a.e("s_nop 1")
            a.e(f"v_add_f32_dpp v{vR2}, v{vR2}, v{vR2} quad_perm:[1,0,3,2] {DPPF}")
            a.e(f"v_add_f32_dpp v{vR2+2}, v{vR2+2}, v{vR2+2} quad_perm:[1,0,3,2] {DPPF}")
            a.e(f"v_cndmask_b32 v{vS+blk}, v{vR2}, v{vR2+2}, {sr(sM0,2)}")
        if args.bar and (grp + 1) % args.bar == 0 and grp != NG - 1:
            a.e("s_barrier")

    a.c("softmax")
    stamp(4)
    vM = vU
    a.e(f"v_max_f32 v{vM}, v{vS}, v{vS+1}")
    a.e(f"v_max3_f32 v{vM}, v{vM}, v{vS+2}, v{vS+3}")
    for sh in (8, 4, 2, 1):
        a.e("s_nop 1")
        a.e(f"v_max_f32_dpp v{vM}, v{vM}, v{vM} row_ror:{sh} {DPPF}")
    a.e(f"s_lshl_b32 s{sT}, s{sWAVE}, 4")
    a.e(f"v_lshl_add_u32 v{vT0+2}, v{vR}, 2, s{sT}")
    a.e("s_mov_b32 exec_lo, 0x00010001")
    a.e("s_mov_b32 exec_hi, 0x00010001")
    a.e(f"ds_write_b32 v{vT0+2}, v{vM} offset:{MX}")
    a.e("s_mov_b64 exec, -1")
    a.e(f"v_lshlrev_b32 v{vT0+3}, 3, v{vC}")
    a.e("s_waitcnt lgkmcnt(0)")
    a.e("s_barrier")
    a.e(f"ds_read_b64 {vr(vU+2,2)}, v{vT0+3} offset:{MX}")
    a.e("s_waitcnt lgkmcnt(0)")
    a.e(f"v_max_f32 v{vM}, v{vU+2}, v{vU+3}")
    for sh in (8, 4, 2, 1):
        a.e("s_nop 1")
        a.e(f"v_max_f32_dpp v{vM}, v{vM}, v{vM} row_ror:{sh} {DPPF}")
    vL = vU + 2
    a.e(f"v_mul_f32 v{vMC}, s{sCS}, v{vM}")
    for k in range(NB):
        a.e(f"v_fma_f32 v{vS+k}, v{vS+k}, s{sCS}, -v{vMC}")
    for k in range(NB):
        a.e(f"v_exp_f32 v{vS+k}, v{vS+k}")
    a.e("s_nop 0")
    for k in range(NB):
        a.e(f"v_cvt_pk_bf16_f32 v{vS+k}, v{vS+k}, v{vS+k}")
    for k in range(NB):
        a.e(f"v_and_b32 v{vT+k}, 0xffff0000, v{vS+k}")
    a.e(f"v_add_f32 v{vL}, v{vT}, v{vT+1}")
    a.e(f"v_add_f32 v{vT+2}, v{vT+2}, v{vT+3}")
    a.e(f"v_add_f32 v{vL}, v{vL}, v{vT+2}")
    for sh in (8, 4, 2, 1):
        a.e("s_nop 1")
        a.e(f"v_add_f32_dpp v{vL}, v{vL}, v{vL} row_ror:{sh} {DPPF}")
    a.e("s_mov_b32 exec_lo, 0x00010001")
    a.e("s_mov_b32 exec_hi, 0x00010001")
    a.e(f"ds_write_b32 v{vT0+2}, v{vL} offset:{MX+128}")
    a.e("s_mov_b64 exec, -1")
    a.e("s_waitcnt lgkmcnt(0)")
    a.e("s_barrier")

    def wave0(fn, nm):
        if args.nosync:
            return
        l = a.newlabel(nm)
        a.e(f"s_cmp_lg_u32 s{sWAVE}, 0")
        a.e(f"s_cbranch_scc1 {l}")
        fn()
        a.label(l)

    sDB = sr(sOUT + 2, 2)
    sWB = sr(sOUT + 4, 2)

    def spin_nonzero(reg, base, off, nm):
        lok = a.newlabel(nm + "ok")
        lsp = a.newlabel(nm + "sp")
        a.e(f"s_cmp_lg_u32 s{reg}, 0")
        a.e(f"s_cbranch_scc1 {lok}")
        a.e(f"s_mov_b32 s{sT+3}, 0")
        a.label(lsp)
        a.e(f"s_atomic_or s{reg}, {base}, s{off} glc")
        a.e(f"s_add_u32 s{sT+3}, s{sT+3}, 1")
        a.e(f"s_lshr_b32 s{sT+1}, s{sT+3}, 18")
        a.e("s_waitcnt lgkmcnt(0)")
        a.e(f"s_or_b32 s{sT+1}, s{sT+1}, s{reg}")
        a.e(f"s_cmp_eq_u32 s{sT+1}, 0")
        a.e(f"s_cbranch_scc1 {lsp}")
        a.label(lok)

    def publish_lse():
        a.e(f"ds_read_b64 {vr(vU+2,2)}, v{vT0+3} offset:{MX+128}")
        a.e("s_waitcnt lgkmcnt(0)")
        a.e(f"v_add_f32 v{vL}, v{vU+2}, v{vU+3}")
        for sh in (8, 4, 2, 1):
            a.e("s_nop 1")
            a.e(f"v_add_f32_dpp v{vL}, v{vL}, v{vL} row_ror:{sh} {DPPF}")
        a.e(f"v_log_f32 v{vL}, v{vL}")
        a.e("s_nop 0")
        a.e(f"v_add_f32 v{vL}, v{vL}, v{vMC}")
        a.e("s_nop 0")
        a.e(f"v_readfirstlane_b32 s{sLSE}, v{vL}")
        spin_nonzero(sZF, sDB, sZO, "z")
        a.e(f"s_not_b32 s{sPAY}, s{sLSE}")
        a.e(f"s_max_u32 s{sPAY}, s{sPAY}, 1")
        a.e(f"s_atomic_swap s{sPAY}, {sWB}, s{sFO} glc")
    wave0(publish_lse, "pub")

    def load_payload():
        a.e("s_waitcnt lgkmcnt(0)")
        a.e(f"s_xor_b32 s{sFO}, s{sFO}, 128")
        a.e(f"s_load_dword s{sPAY}, {sWB}, s{sFO} glc")

    def finish_factor():
        a.e("s_waitcnt lgkmcnt(0)")
        spin_nonzero(sPAY, sWB, sFO, "p")
        a.e(f"s_not_b32 s{sPAY}, s{sPAY}")
        a.e(f"v_mov_b32 v{vU+2}, s{sPAY}")
        a.e(f"v_max_f32 v{vU}, s{sLSE}, v{vU+2}")
        a.e(f"v_sub_f32 v{vU+1}, s{sLSE}, v{vU}")
        a.e(f"v_sub_f32 v{vU+2}, v{vU+2}, v{vU}")
        a.e(f"v_sub_f32 v{vU+3}, v{vMC}, v{vU}")
        a.e(f"v_exp_f32 v{vU+1}, v{vU+1}")
        a.e(f"v_exp_f32 v{vU+2}, v{vU+2}")
        a.e(f"v_exp_f32 v{vU+3}, v{vU+3}")
        a.e(f"v_add_f32 v{vU+1}, v{vU+1}, v{vU+2}")
        a.e(f"v_rcp_f32 v{vU+1}, v{vU+1}")
        a.e(f"v_mov_b32 v{vU+4}, 0")
        a.e(f"v_mul_f32 v{vU+1}, v{vU+1}, v{vU+3}")
        a.e("s_mov_b64 exec, 1")
        a.e(f"ds_write_b32 v{vU+4}, v{vU+1} offset:{QP}")
        a.e("s_mov_b64 exec, -1")

    for grp in range(NG):
        i0 = NG * 4 + grp * 4
        blk = grp // 4
        a.c(f"V group {grp}")
        flow(NG + grp)
        for t in range(4):
            onehot(vOH + 4 * t, vS + blk, bitrev4((grp % 4) * 4 + t))
        arrive(i0 + 3)
        flow_read(NG + grp)
        a.e("s_nop 1")
        for t in range(4):
            cs = "0" if (grp == 0 and t == 0) else vr(vACC, 4)
            a.e(f"v_mfma_f32_16x16x32_bf16 {vr(vACC,4)}, {vr(vOH+4*t,4)}, {vr(slot(i0+t),4)}, {cs}")
        st["consumed"] += 4
        if not args.DT:
            top_up(DSS)
        if grp == args.g_load:
            wave0(load_payload, "ldp")
        if grp == args.g_fin:
            wave0(finish_factor, "fin")
        if args.bar and (grp + 1) % args.bar == 0 and grp != NG - 1:
            a.e("s_barrier")

    assert wo_state["n"] == 20
    a.c("epilogue")
    stamp(5)
    a.e("s_nop 7")
    a.e("s_mov_b32 exec_hi, 0")
    a.e(f"ds_write_b128 v{vT0+1}, {vr(vACC,4)} offset:{OP}")
    a.e("s_mov_b64 exec, -1")
    a.e(f"v_lshrrev_b32 v{vT0+2}, 2, v{vC}")
    a.e(f"v_and_b32 v{vT0+3}, 3, v{vC}")
    a.e(f"v_lshl_add_u32 v{vT0+3}, v{vT0+3}, 2, v{vR}")
    a.e(f"s_lshl_b32 s{sT}, s{sWAVE}, 4")
    a.e(f"v_add_u32 v{vT0+3}, s{sT}, v{vT0+3}")
    a.e(f"v_lshlrev_b32 v{vT0+3}, 2, v{vT0+3}")
    a.e(f"v_lshl_add_u32 v{vT0+3}, v{vT0+2}, 10, v{vT0+3}")
    a.e(f"v_mov_b32 v{vU+4}, 0")
    a.e("s_waitcnt lgkmcnt(0)")
    a.e("s_barrier")
    a.e(f"ds_read2st64_b32 {vr(vU,2)}, v{vT0+3} offset0:{OP//256} offset1:{OP//256+2}")
    a.e(f"ds_read_b32 v{vU+2}, v{vU+4} offset:{QP}")
    assert OP % 256 == 0
    a.e(f"s_mul_i32 s{sT}, s{sWAVE}, 2560")
    a.e(f"v_add_u32 v{vT0+2}, s{sT}, v{vT0}")
    a.e("s_waitcnt lgkmcnt(0)")
    a.e(f"v_add_f32 v{vU}, v{vU}, v{vU+1}")
    for sh in (4, 8):
        a.e("s_nop 1")
        a.e(f"v_add_f32_dpp v{vU}, v{vU}, v{vU} row_ror:{sh} {DPPF}")
    a.e(f"v_mul_f32 v{vU}, v{vU}, v{vU+2}")
    a.e(f"v_cvt_pk_bf16_f32 v{vU}, v{vU}, v{vU}")
    a.e("s_nop 1")
    for rg in range(RG):
        onehot(vOH + 4 * rg, vU, rg)
    a.wait([("wo", i) for i in range(20)])
    a.e("s_nop 1")
    for rg in range(RG):
        for seg in range(5):
            cs = "0" if rg == 0 else vr(vY + 4 * seg, 4)
            a.e(f"v_mfma_f32_16x16x32_bf16 {vr(vY+4*seg,4)}, {vr(vOH+4*rg,4)}, {vr(vW+4*(rg*5+seg),4)}, {cs}")
    stamp(6)
    a.e("s_mov_b32 exec_hi, 0")
    a.e("s_nop 3")
    for seg in range(5):
        a.e(f"ds_write_b128 v{vT0+2}, {vr(vY+4*seg,4)} offset:{YP+seg*512}")
    a.e("s_mov_b64 exec, -1")
    a.e(f"s_lshl_b32 s{sT}, s{sWAVE}, 9")
    a.e(f"v_lshlrev_b32 v{vT0+2}, 2, v{vLANE}")
    a.e(f"v_add_u32 v{vT0+2}, s{sT}, v{vT0+2}")
    a.e("s_waitcnt lgkmcnt(0)")
    a.e("s_barrier")
    a.e(f"s_cmp_ge_u32 s{sWAVE}, 5")
    a.e("s_cbranch_scc1 L_end")
    assert YP % 256 == 0
    for w in range(W):
        a.e(f"ds_read2st64_b32 {vr(vW+2*w,2)}, v{vT0+2} offset0:{YP//256+w*10} offset1:{YP//256+w*10+1}")
    a.e(f"s_mul_i32 s{sT}, s{sGRP}, 2560")
    a.e("s_waitcnt lgkmcnt(0)")
    for w in range(1, W):
        a.e(f"v_add_f32 v{vW}, v{vW}, v{vW+2*w}")
        a.e(f"v_add_f32 v{vW+1}, v{vW+1}, v{vW+2*w+1}")
    a.e(f"buffer_atomic_add_f32 v{vW}, v{vT0+2}, {sr(sWS,4)}, s{sT} offen offset:{WS_ACC}")
    a.e(f"buffer_atomic_add_f32 v{vW+1}, v{vT0+2}, {sr(sWS,4)}, s{sT} offen offset:{WS_ACC+256}")
    a.e("s_waitcnt vmcnt(0)")
    a.e("s_barrier")
    a.e(f"s_cmp_lg_u32 s{sWAVE}, 0")
    a.e("s_cbranch_scc1 L_end")
    a.e(f"s_lshl_b32 s{sT+1}, s{sGRP}, 6")
    a.e(f"s_mov_b32 s{sREP}, 1")
    a.e(f"s_atomic_add s{sREP}, {sDB}, s{sT+1} glc")
    a.e("s_waitcnt lgkmcnt(0)")
    a.e(f"s_cmp_lg_u32 s{sREP}, 63")
    a.e("s_cbranch_scc1 L_end")
    a.e(f"v_lshlrev_b32 v{vU}, 3, v{vLANE}")
    for k in range(5):
        a.e(f"v_mov_b32 v{vW+2*k}, 0")
        a.e(f"v_mov_b32 v{vW+2*k+1}, 0")
    for k in range(5):
        a.e(f"buffer_atomic_or_x2 {vr(vW+2*k,2)}, v{vU}, {sr(sWS,4)}, s{sT} offen offset:{WS_ACC+512*k} sc0")
    a.e(f"s_mul_i32 s{sT+1}, s{sB}, 2560")
    a.e(f"s_mul_i32 s{sT+2}, s{sBLK}, 1280")
    a.e(f"s_add_u32 s{sT+1}, s{sT+1}, s{sT+2}")
    a.e(f"v_lshlrev_b32 v{vU+1}, 2, v{vLANE}")
    for k in range(5):
        a.e("s_waitcnt vmcnt(4)")
        a.e(f"v_cvt_pk_bf16_f32 v{vW+16+k}, v{vW+2*k}, v{vW+2*k+1}")
        a.e(f"buffer_store_dword v{vW+16+k}, v{vU+1}, {sr(sO,4)}, s{sT+1} offen offset:{256*k}")
    a.label("L_end")
    if inst:
        a.e("s_mov_b64 exec, -1")
        stamp(7)
        a.e(f"s_getreg_b32 s{sT+1}, hwreg(HW_REG_XCC_ID)")
        a.e(f"s_getreg_b32 s{sT+2}, hwreg(HW_REG_HW_ID)")
        a.e("s_waitcnt lgkmcnt(0)")
        a.e(f"v_mov_b32 v{vU}, 0")
        for k in range(8):
            a.e(f"v_writelane_b32 v{vU}, s{sST+2*k}, {k}")
        a.e(f"v_writelane_b32 v{vU}, s{sT+1}, 14")
        a.e(f"v_writelane_b32 v{vU}, s{sT+2}, 15")
        a.e(f"s_mul_i32 s{sT}, s{sWG}, {W}")
        a.e(f"s_add_u32 s{sT}, s{sT}, s{sWAVE}")
        a.e(f"s_lshl_b32 s{sT}, s{sT}, 6")
        a.e(f"s_add_u32 s{sT}, s{sT}, {WS_ST}")
        a.e(f"v_lshlrev_b32 v{vU+1}, 2, v{vLANE}")
        a.e("s_mov_b64 exec, 0xffff")
        a.e(f"buffer_store_dword v{vU}, v{vU+1}, {sr(sWS,4)}, s{sT} offen")
        if args.dbgt:
            a.e(f"s_cmp_lg_u32 s{sWAVE}, 0")
            a.e("s_cbranch_scc1 L_exit")
            a.e(f"s_not_b32 s{sT+1}, s{sST}")
            a.e(f"s_not_b32 s{sT+2}, s{sST+14}")
            a.e(f"v_mov_b32 v{vU+2}, 0")
            a.e(f"v_mov_b32 v{vU+3}, 0")
            items = [(1, sT+1), (2, sST+6), (3, sST+8), (12, sST+10), (13, sST+14), (14, sT+2), (15, sST+2)]
            for k, (dw, sreg) in enumerate(items):
                a.e(f"v_writelane_b32 v{vU+2}, s{sreg}, {k}")
                a.e(f"s_mov_b32 s{sT+3}, {dw*4}")
                a.e(f"v_writelane_b32 v{vU+3}, s{sT+3}, {k}")
            a.e("s_mov_b64 exec, 0x7f")
            a.e(f"buffer_atomic_umax v{vU+2}, v{vU+3}, {sr(sDBG,4)}, 0 offen")
    a.label("L_exit")
    a.e("s_endpgm")

    acc = (VGPRS + 3) // 4 * 4
    a.raw('.section .rodata,"a"')
    a.raw(".p2align 6")
    a.raw(f""".amdhsa_kernel {KNAME}
  .amdhsa_next_free_vgpr {VGPRS}
  .amdhsa_next_free_sgpr {SGPRS}
  .amdhsa_accum_offset {acc}
  .amdhsa_group_segment_fixed_size 0
  .amdhsa_kernarg_size 104
  .amdhsa_user_sgpr_count 2
  .amdhsa_user_sgpr_kernarg_segment_ptr 1
  .amdhsa_system_sgpr_workgroup_id_x 1
  .amdhsa_float_denorm_mode_32 3
.end_amdhsa_kernel
""")
    return finalize(a.text(), args)


if __name__ == "__main__":
    ap = argparse.ArgumentParser()
    ap.add_argument("-o", default=f"cdna_kernels/{NAME}.s")
    ap.add_argument("--NP", type=int, default=28)
    ap.add_argument("--D", type=int, default=6)
    ap.add_argument("--lr", type=int, default=2)
    ap.add_argument("--pat", default="0123568974+44")
    ap.add_argument("--bar", type=int, default=4)
    ap.add_argument("--hbar", type=int, default=1)
    ap.add_argument("--wo0", type=int, default=0)
    ap.add_argument("--wo1", type=int, default=0)
    ap.add_argument("--wog", type=int, default=2)
    ap.add_argument("--head", default="QKQKQKQKQK")
    ap.add_argument("--head2", default="KK")
    ap.add_argument("--K0", type=int, default=8)
    ap.add_argument("--K1", type=int, default=16)
    ap.add_argument("--g_set", type=int, default=1)
    ap.add_argument("--g_load", type=int, default=12)
    ap.add_argument("--g_check", type=int, default=12)
    ap.add_argument("--inst", type=int, default=0)
    ap.add_argument("--DT", type=int, default=4)
    ap.add_argument("--fc", type=int, default=0)
    ap.add_argument("--pol", default="nnnnnnnn")
    ap.add_argument("--kh", default="nt")
    ap.add_argument("--wh", default="nt")
    ap.add_argument("--map", type=int, default=0)
    ap.add_argument("--xm", default="0")
    ap.add_argument("--DS", type=int, default=3)
    ap.add_argument("--theta", type=int, default=24)
    ap.add_argument("--fg0", type=int, default=8)
    ap.add_argument("--fg1", type=int, default=28)
    ap.add_argument("--fp", type=int, default=2)
    ap.add_argument("--g_fin", type=int, default=14)
    ap.add_argument("--g_zset", type=int, default=3)
    ap.add_argument("--g_zld", type=int, default=13)
    ap.add_argument("--boost", type=int, default=0)
    ap.add_argument("--b0", type=int, default=36)
    ap.add_argument("--b1", type=int, default=56)
    ap.add_argument("--rot", type=int, default=0)
    ap.add_argument("--cu", type=int, default=1)
    ap.add_argument("--Dh", type=int, default=0)
    ap.add_argument("--wot", type=int, default=2)
    ap.add_argument("--noq", type=int, default=0)
    ap.add_argument("--noo", type=int, default=0)
    ap.add_argument("--nosync", type=int, default=0)
    ap.add_argument("--dbgt", type=int, default=0)
    args = ap.parse_args()
    open(args.o, "w").write(gen(args))
```

```python
import sys, math, struct, argparse

NAME = "concat_heads__gqa_block_cached__gqa_block_cached__decode"
KNAME = NAME + "_kernel"


def f32bits(x):
    return struct.unpack("<I", struct.pack("<f", x))[0]


def bitrev4(t):
    return ((t & 1) << 3) | ((t & 2) << 1) | ((t & 4) >> 1) | ((t & 8) >> 3)


class Asm:
    def __init__(self):
        self.lines = []
        self.vm = []
        self.nlabel = 0

    def e(self, s):
        self.lines.append("    " + s)

    def c(self, s):
        self.lines.append("    ; " + s)

    def label(self, s):
        self.lines.append(s + ":")

    def newlabel(self, base):
        self.nlabel += 1
        return f"L_{base}_{self.nlabel}"

    def raw(self, s):
        self.lines.append(s)

    def vmem(self, s, tag):
        self.e(s)
        self.vm.append(tag)
        assert len(self.vm) <= 58, "too many outstanding vmem ops"

    def mark(self, tag):
        self.vm.append(("mark", tag))

    def count_after(self, tag):
        idx = max(i for i, t in enumerate(self.vm) if t == tag)
        return sum(1 for t in self.vm[idx + 1:] if not (isinstance(t, tuple) and t[0] == "mark"))

    def wait(self, tags):
        if not isinstance(tags, (list, set)):
            tags = [tags]
        last = -1
        for i, t in enumerate(self.vm):
            if t in tags:
                last = i
        if last < 0:
            return
        n = sum(1 for t in self.vm[last + 1:] if not (isinstance(t, tuple) and t[0] == "mark"))
        self.e(f"s_waitcnt vmcnt({n})")
        self.vm = self.vm[last + 1:]

    def limit(self, n):
        real = [i for i, t in enumerate(self.vm) if not (isinstance(t, tuple) and t[0] == "mark")]
        if len(real) <= n:
            return
        last = real[len(real) - n - 1]
        self.e(f"s_waitcnt vmcnt({n})")
        self.vm = self.vm[last + 1:]

    def text(self):
        return "\n".join(self.lines) + "\n"


def vr(a, n=1):
    return f"v{a}" if n == 1 else f"v[{a}:{a+n-1}]"


def sr(a, n=1):
    return f"s{a}" if n == 1 else f"s[{a}:{a+n-1}]"


def finalize(text, args):
    import re
    pol = args.pol
    assert len(pol) == 8

    def sub(body, p4):
        for ch, c in zip("KVQO", p4):
            body = body.replace("@H" + ch, " nt" if c == "n" else "")
        return body
    if pol[:4] == pol[4:]:
        return sub(text, pol[:4])
    k0 = text.index("    s_cbranch_scc1 L_exit\n") + len("    s_cbranch_scc1 L_exit\n")
    k1 = text.index("L_exit:\n")
    head, body, tail = text[:k0], text[k0:k1], text[k1:]
    bit = {0: 2, 1: 5, 2: 7}[args.map]
    ren = lambda b, sfx: re.sub(r"\bL_(?!exit)(\w+)", lambda m: "L_" + m.group(1) + sfx, b)
    out = head + f"    s_bitcmp1_b32 s2, {bit}\n    s_cbranch_scc1 L_bodyB\n"
    out += ren(sub(body, pol[:4]), "_a") + "    s_endpgm\nL_bodyB:\n" + ren(sub(body, pol[4:]), "_b") + tail
    return out


def gen(args):
    a = Asm()
    W = 8
    NP = args.NP
    DSS = args.D
    inst = args.inst
    hint = (" " + args.wh) if args.wh else ""
    khint = (" " + args.kh) if args.kh else ""
    NG = 16
    NB = 4
    NWQ = 20
    RG = 4
    CSCALE = (128 ** -0.5) * math.log2(math.e)
    LR = args.lr

    QP = 0
    QF = QP + W * 512
    MX = QF + W * 256
    LS = MX + 64
    FF = LS + 64
    OP = MX + 256
    YP = OP + W * 512
    MODEA = YP + W * 2560
    LDS_BYTES = MODEA + 64

    WS_ACC = 0
    WS_LSE = 65536
    WS_ST = 4 * 1024 * 1024
    DBG_FLAG = 16
    DBG_ZERO = 80

    vTID, vLANE, vC, vR, vKOFF, vWQOFF, vWOOFF, vXOFF, vX0, vX1 = range(10)
    vT0 = 10
    vKOFF2 = 15
    vZ = 14
    vMODE = 55
    vQ = 16
    vMASK = 20
    vACC = 24
    vS = 28
    vOH = 32
    vT = vOH
    vR2 = vOH + 4
    vU = 48
    vBUF = 56
    vW = vBUF + NP * 4
    vY = vBUF
    VGPRS = vW + NWQ * 4
    assert VGPRS <= 256, VGPRS
    vLSE = vX0
    vFLG = vX1
    vPAY = vXOFF
    vMC = vWQOFF

    sWG = 2
    sKA = 4
    sP = 8
    sOUT = 20
    sBLK, sH, sB, sSPLIT, sWAVE, sIDX = 26, 27, 28, 29, 30, 31
    sK, sV, sWQ, sWO, sX, sWS = 32, 36, 40, 44, 48, 52
    sOFF = 56
    sT = 57
    sM1, sM0 = 64, 66
    sCS = 68
    sGRP = 69
    sOK = 70
    sQO = 71
    sDBG = 72
    sO = 76
    sLSE, sPAY, sFLG, sZF, sREP, sFO, sZO, sSHO = 6, 7, 18, 19, 3, 62, 63, 61
    sXO, sKO = 72, 73
    sST = 80
    SGPRS = 80 if not inst else 100

    def stamp(k):
        if inst:
            a.e(f"s_memrealtime s[{sST+2*k}:{sST+2*k+1}]")

    DPPF = "row_mask:0xf bank_mask:0xf"

    a.raw("; generated by gen/gen4.py (fused decode attention: q-proj + flash-decoding + out-proj)")
    a.raw(f"; @launch grid=(256,1,1) block=({W*64},1,1) lds={LDS_BYTES}")
    a.raw('.amdgcn_target "amdgcn-amd-amdhsa--gfx950"')
    a.raw(".text")
    a.raw(f".globl {KNAME}")
    a.raw(".p2align 8")
    a.raw(f".type {KNAME},@function")
    a.label(KNAME)
    a.e(f"s_cmp_ge_u32 s{sWG}, 256")
    a.e("s_cbranch_scc1 L_exit")
    stamp(0)
    a.e(f"s_and_b32 s{sT}, s{sWG}, 7")
    if args.map == 0:
        a.e(f"s_lshr_b32 s{sBLK}, s{sT}, 2")
    elif args.map in (1, 3):
        a.e(f"s_bfe_u32 s{sBLK}, s{sWG}, 0x10005")
        if args.map == 3:
            a.e(f"s_xor_b32 s{sT}, s{sT}, s{sBLK}")
    elif args.map == 4:
        a.e(f"s_and_b32 s{sBLK}, s{sWG}, 1")
        a.e(f"s_lshr_b32 s{sT}, s{sT}, 1")
    elif args.map == 5:
        a.e(f"s_bfe_u32 s{sBLK}, s{sWG}, 0x10001")
        a.e(f"s_lshr_b32 s{sT+1}, s{sT}, 2")
        a.e(f"s_lshl_b32 s{sT+1}, s{sT+1}, 1")
        a.e(f"s_and_b32 s{sT}, s{sT}, 1")
        a.e(f"s_or_b32 s{sT}, s{sT}, s{sT+1}")
    else:
        a.e(f"s_lshr_b32 s{sBLK}, s{sWG}, 7")
    a.e(f"s_mul_i32 s{sT+3}, s{sBLK}, 40")
    a.e(f"s_add_u32 s{sKA}, s0, s{sT+3}")
    a.e(f"s_addc_u32 s{sKA+1}, s1, 0")
    a.e(f"s_load_dwordx8 {sr(sP,8)}, {sr(sKA,2)}, 0")
    a.e(f"s_load_dwordx2 {sr(sP+8,2)}, {sr(sKA,2)}, 32")
    a.e(f"s_load_dwordx4 {sr(sOUT,4)}, s[0:1], 80")
    a.e(f"s_load_dwordx2 {sr(sOUT+4,2)}, s[0:1], 96")
    a.e(f"s_lshr_b32 s{sT+1}, s{sWG}, 3")
    if args.map in (0, 4, 5):
        a.e(f"s_lshl_b32 s{sT}, s{sT}, 3")
        a.e(f"s_lshr_b32 s{sT+2}, s{sT+1}, 2")
        a.e(f"s_add_u32 s{sT}, s{sT}, s{sT+2}")
        a.e(f"s_and_b32 s{sH}, s{sT}, 31")
    elif args.map in (1, 3):
        a.e(f"s_lshl_b32 s{sT}, s{sT}, 2")
        a.e(f"s_lshr_b32 s{sT+2}, s{sT+1}, 3")
        a.e(f"s_add_u32 s{sH}, s{sT}, s{sT+2}")
    else:
        a.e(f"s_lshl_b32 s{sT}, s{sT}, 2")
        a.e(f"s_bfe_u32 s{sT+2}, s{sT+1}, 0x20002")
        a.e(f"s_add_u32 s{sH}, s{sT}, s{sT+2}")
    a.e(f"s_lshr_b32 s{sB}, s{sT+1}, 1")
    a.e(f"s_and_b32 s{sB}, s{sB}, 1")
    a.e(f"s_and_b32 s{sSPLIT}, s{sT+1}, 1")
    a.e(f"v_and_b32 v{vLANE}, 63, v{vTID}")
    a.e(f"v_lshrrev_b32 v{vT0}, 6, v{vTID}")
    a.e(f"v_and_b32 v{vC}, 15, v{vTID}")
    a.e(f"v_readfirstlane_b32 s{sWAVE}, v{vT0}")
    a.e(f"v_lshrrev_b32 v{vR}, 4, v{vLANE}")
    a.e(f"s_lshl_b32 s{sGRP}, s{sBLK}, 1")
    a.e(f"s_add_u32 s{sGRP}, s{sGRP}, s{sB}")
    a.e(f"s_lshl_b32 s{sIDX}, s{sGRP}, 5")
    a.e(f"s_add_u32 s{sIDX}, s{sIDX}, s{sH}")
    a.e(f"s_lshl_b32 s{sIDX}, s{sIDX}, 1")
    a.e(f"s_add_u32 s{sIDX}, s{sIDX}, s{sSPLIT}")
    PT = [int(ch) for ch in args.pat[:10]]
    assert sorted(PT) == list(range(10))
    COL = [0] * 10
    for k, src in enumerate([0, 1, 6, 7, 8, 2, 3, 4, 5, 9]):
        COL[src] = 1 << PT[k]
    r = args.pat[10:]
    while r:
        assert r[0] == "+"
        COL[int(r[1])] ^= 1 << int(r[2])
        r = r[3:]
    WSMASK = COL[6] | COL[7] | COL[8] | COL[9]
    a.e(f"v_lshlrev_b32 v{vKOFF}, 4, v{vLANE}")
    a.e(f"s_mul_i32 s{sT}, s{sSPLIT}, {COL[9] << 10}")
    for k in range(3):
        a.e(f"s_bfe_u32 s{sT+1}, s{sWAVE}, 0x{(1<<16)|k:x}")
        a.e(f"s_mul_i32 s{sT+1}, s{sT+1}, {COL[6+k] << 10}")
        a.e(f"s_xor_b32 s{sT}, s{sT}, s{sT+1}")
    XM = int(args.xm, 16)
    if XM:
        a.e(f"s_mov_b32 s{sXO}, 0")
        srcs = [(sSPLIT, 0), (sB, 0)] + [(sH, k) for k in range(5)] + [(sBLK, 0)]
        for k, (reg, bit) in enumerate(srcs):
            nib = (XM >> (4 * k)) & 15
            if not nib:
                continue
            cst = 0
            for j in range(4):
                if (nib >> j) & 1:
                    cst ^= COL[2 + j]
            assert cst & 3 == 0
            a.e(f"s_bitcmp1_b32 s{reg}, {bit}")
            a.e(f"s_cselect_b32 s{sT+1}, {cst << 10}, 0")
            a.e(f"s_xor_b32 s{sXO}, s{sXO}, s{sT+1}")
        a.e(f"s_and_b32 s{sT+1}, s{sXO}, {WSMASK << 10}")
        a.e(f"s_xor_b32 s{sT}, s{sT}, s{sT+1}")
        a.e(f"s_andn2_b32 s{sXO}, s{sXO}, {WSMASK << 10}")
    a.e(f"v_add_u32 v{vKOFF}, s{sT}, v{vKOFF}")

    def tile_T(t):
        T = 0
        for k in range(6):
            if (t >> k) & 1:
                T ^= COL[k]
        return T
    OVL = sorted(set(tile_T(t) & WSMASK for t in range(64)))
    assert len(OVL) <= 2
    KOFFREG = {0: vKOFF}
    if len(OVL) == 2:
        KOFFREG[OVL[1]] = vKOFF2
        a.e(f"v_xor_b32 v{vKOFF2}, {OVL[1] << 10}, v{vKOFF}")
    a.e(f"s_mul_i32 s{sT}, s{sWAVE}, {NWQ*4}")
    a.e(f"v_add_u32 v{vWQOFF}, s{sT}, v{vR}")
    a.e(f"v_lshlrev_b32 v{vWQOFF}, 13, v{vWQOFF}")
    a.e(f"v_lshl_add_u32 v{vWQOFF}, v{vC}, 4, v{vWQOFF}")
    if args.rot:
        a.e(f"s_lshl_b32 s{sQO}, s{sB}, 1")
        a.e(f"s_add_u32 s{sQO}, s{sQO}, s{sSPLIT}")
        a.e(f"s_mul_i32 s{sQO}, s{sQO}, 5")
        for reg, add in ((vXOFF, 0), (vX1, 16)):
            a.e(f"v_add_u32 v{reg}, s{sQO}, v{vC}")
            if add:
                a.e(f"v_add_u32 v{reg}, {add}, v{reg}")
            for _ in range(2 if add else 1):
                a.e(f"v_subrev_u32 v{vT0}, 20, v{reg}")
                a.e(f"v_min_u32 v{reg}, v{reg}, v{vT0}")
            a.e(f"v_lshl_add_u32 v{reg}, v{reg}, 2, v{vR}")
            a.e(f"v_add_u32 v{reg}, s{sT}, v{reg}")
            a.e(f"v_lshlrev_b32 v{reg}, 1, v{reg}")
        a.e(f"s_lshl_b32 s{sQO}, s{sQO}, 15")
    else:
        a.e(f"v_lshl_add_u32 v{vXOFF}, v{vC}, 2, v{vR}")
        a.e(f"v_add_u32 v{vXOFF}, s{sT}, v{vXOFF}")
        a.e(f"v_lshlrev_b32 v{vXOFF}, 1, v{vXOFF}")
        a.e(f"v_add_u32 v{vX1}, 128, v{vXOFF}")
    a.e(f"s_mul_i32 s{sT}, s{sWAVE}, {RG*4}")
    a.e(f"v_add_u32 v{vWOOFF}, s{sT}, v{vR}")
    a.e(f"v_mul_u32_u24 v{vWOOFF}, 1280, v{vWOOFF}")
    a.e(f"v_lshl_add_u32 v{vWOOFF}, v{vC}, 4, v{vWOOFF}")
    a.e("s_waitcnt lgkmcnt(0)")
    stamp(1)
    a.e(f"s_mul_i32 s{sT}, s{sB}, 1280")
    a.e(f"s_add_u32 s{sX}, s{sP}, s{sT}")
    a.e(f"s_addc_u32 s{sX+1}, s{sP+1}, 0")
    a.e(f"s_mov_b32 s{sX+2}, 1280")
    a.e(f"s_mov_b32 s{sX+3}, 0x20000")
    a.e(f"s_lshl_b32 s{sT}, s{sH}, 8")
    a.e(f"s_add_u32 s{sWQ}, s{sP+6}, s{sT}")
    a.e(f"s_addc_u32 s{sWQ+1}, s{sP+7}, 0")
    a.e(f"s_sub_u32 s{sWQ+2}, {640*8192}, s{sT}")
    a.e(f"s_mov_b32 s{sWQ+3}, 0x20000")

    stream = [("K", t) for t in range(NG * 4)] + [("V", t) for t in range(NG * 4)]
    st = {"issued": 0, "consumed": 0, "soff": None}

    def set_soff(v):
        if v == 0:
            return "0"
        if st["soff"] != v:
            a.e(f"s_mov_b32 s{sOFF}, {v}")
            st["soff"] = v
        return f"s{sOFF}"

    def slot(i):
        return vBUF + (i % NP) * 4

    def issue_one(lim=0):
        if lim:
            a.limit(lim - 1)
        i = st["issued"]
        kind, t = stream[i]
        buf = slot(i)
        if True:
            srd = sK if kind == "K" else sV
            T = tile_T(t)
            koff = KOFFREG[T & WSMASK]
            off = (T & ~WSMASK) << 10
            imm = off % 4096
            if XM:
                if st.get("koff") != off - imm:
                    a.e(f"s_xor_b32 s{sKO}, s{sXO}, {off - imm}")
                    st["koff"] = off - imm
                sos = f"s{sKO}"
            else:
                sos = set_soff(off - imm)
            immS = f" offset:{imm}" if imm else ""
            a.vmem(f"buffer_load_dwordx4 {vr(buf,4)}, v{koff}, {sr(srd,4)}, {sos} offen{immS}@H{kind}", ("S", i))
        st["issued"] = i + 1

    def top_up(limit):
        limit = min(limit, NP)
        while st["issued"] < len(stream) and st["issued"] - st["consumed"] < limit:
            issue_one()

    def arrive(i_last):
        if not args.DT:
            a.wait(("S", i_last))
            return
        def one():
            if wo_state["n"] < 20 and args.wot and st["issued"] % args.wot == 0 and qst["done"] == 5:
                issue_wo(1)
            issue_one()
        if st["issued"] - (i_last + 1) >= args.DT:
            n = args.cu if st.get("primed") else args.DT
            for _ in range(n):
                if st["issued"] < len(stream) and st["issued"] - st["consumed"] < NP:
                    a.limit(args.DT - 1)
                    one()
                    st["primed"] = True
            a.wait(("S", i_last))
            return
        for i in range(i_last - 3, i_last + 1):
            a.wait(("S", i))
            while st["issued"] < len(stream) and st["issued"] - (i + 1) < args.DT and st["issued"] - st["consumed"] < NP:
                if args.fc and fcs["on"] and len(a.vm) > args.DS - 1:
                    l = a.newlabel("sh")
                    a.e(f"s_cbranch_vccnz {l}")
                    a.e(f"s_waitcnt vmcnt({args.DS - 1})")
                    a.label(l)
                one()

    fcs = {"on": False, "k": 0, "pend": None, "rd": False}

    def flow(G):
        if not args.fc:
            return
        if fcs["rd"]:
            a.e("s_waitcnt lgkmcnt(0)")
            a.e(f"v_readfirstlane_b32 s{sT}, v{vMODE}")
            a.e("s_nop 3")
            a.e(f"s_cmp_lg_u32 s{sT}, 0")
            a.e("s_cselect_b64 vcc, -1, 0")
            fcs["on"] = True
            fcs["rd"] = False
        if fcs["pend"] is not None:
            k = fcs["pend"]
            def wr():
                a.e("s_waitcnt lgkmcnt(0)")
                a.e(f"s_cmp_ge_u32 s{sREP}, {64*k + args.theta}")
                a.e(f"s_cselect_b32 s{sT}, 1, 0")
                a.e(f"v_mov_b32 v{vMODE}, s{sT}")
                a.e(f"ds_write_b32 v{vZ}, v{vMODE} offset:{MODEA}")
            wave0(wr, "fw")
            fcs["pend"] = None
        if G >= args.fg0 and G <= args.fg1 and (G - args.fg0) % args.fp == 0:
            def rep():
                a.e(f"s_mov_b32 s{sREP}, 1")
                a.e(f"s_atomic_add s{sREP}, {sr(sOUT+2,2)}, s{sSHO} glc")
            wave0(rep, "fr")
            fcs["pend"] = fcs["k"]
            fcs["k"] += 1

    def flow_read(G):
        if args.fc and G > args.fg0 and G < 31:
            a.e(f"ds_read_b32 v{vMODE}, v{vZ} offset:{MODEA}")
            fcs["rd"] = True

    def wave0(fn, nm):
        if args.nosync:
            return
        l = a.newlabel(nm)
        a.e(f"s_cmp_lg_u32 s{sWAVE}, 0")
        a.e(f"s_cbranch_scc1 {l}")
        fn()
        a.label(l)

    a.vmem(f"buffer_load_ushort v{vX0}, v{vXOFF}, {sr(sX,4)}, 0 offen nt", "x")
    a.vmem(f"buffer_load_ushort v{vX1}, v{vX1}, {sr(sX,4)}, 0 offen nt", "x")
    a.e(f"s_bfe_u32 s{sT}, s{sIDX}, 0x60001")
    a.e(f"s_lshl_b32 s{sT}, s{sT}, 20")
    a.e(f"s_add_u32 s{sK}, s{sP+2}, s{sT}")
    a.e(f"s_addc_u32 s{sK+1}, s{sP+3}, 0")
    a.e(f"s_mov_b32 s{sK+2}, {1024*1024}")
    a.e(f"s_mov_b32 s{sK+3}, 0x20000")
    a.e(f"s_add_u32 s{sV}, s{sP+4}, s{sT}")
    a.e(f"s_addc_u32 s{sV+1}, s{sP+5}, 0")
    a.e(f"s_mov_b32 s{sV+2}, {1024*1024}")
    a.e(f"s_mov_b32 s{sV+3}, 0x20000")
    a.e(f"s_mul_i32 s{sT}, s{sH}, {128*1280}")
    a.e(f"s_add_u32 s{sWO}, s{sP+8}, s{sT}")
    a.e(f"s_addc_u32 s{sWO+1}, s{sP+9}, 0")
    a.e(f"s_mov_b32 s{sWO+2}, {128*1280}")
    a.e(f"s_mov_b32 s{sWO+3}, 0x20000")
    a.e(f"s_mov_b32 s{sWS}, s{sOUT+4}")
    a.e(f"s_mov_b32 s{sWS+1}, s{sOUT+5}")
    a.e(f"s_mov_b32 s{sWS+2}, {8*1024*1024}")
    a.e(f"s_mov_b32 s{sWS+3}, 0x20000")
    a.e(f"s_mov_b32 s{sO}, s{sOUT}")
    a.e(f"s_mov_b32 s{sO+1}, s{sOUT+1}")
    a.e(f"s_mov_b32 s{sO+2}, 5120")
    a.e(f"s_mov_b32 s{sO+3}, 0x20000")
    wo_state = {"n": 0}

    def issue_wo(n):
        for _ in range(n):
            k = wo_state["n"]
            if k >= 20:
                return
            rg, seg = divmod(k, 5)
            sos = set_soff(rg * 5120)
            immS = f" offset:{seg*256}" if seg else ""
            if not args.noo: a.vmem(f"buffer_load_dwordx4 {vr(vW+4*k,4)}, v{vWOOFF}, {sr(sWO,4)}, {sos} offen{immS}@HO", ("wo", k))
            wo_state["n"] = k + 1

    qst = {"issued": 0, "done": 0, "prep": False}

    def issue_q(n=4):
        for _ in range(n):
            t = qst["issued"]
            if args.Dh:
                a.limit(args.Dh - 1)
            sos = f"s{sQO}" if args.rot else set_soff(t * 32768)
            if not args.noq: a.vmem(f"buffer_load_dwordx4 {vr(vW+4*t,4)}, v{vWQOFF}, {sr(sWQ,4)}, {sos} offen@HQ", ("Q", t))
            if args.rot and t < 19:
                a.e(f"s_add_u32 s{sQO}, s{sQO}, 32768")
                if t % 5 == 4:
                    a.e(f"s_cmp_eq_u32 s{sQO}, {20*32768}")
                    a.e(f"s_cselect_b32 s{sQO}, 0, s{sQO}")
            qst["issued"] += 1

    def onehot(dst, src, lane):
        for j in range(4):
            a.e(f"v_and_b32_dpp v{dst+j}, v{src}, v{vMASK+j} row_newbcast:{lane} {DPPF}")

    def consume_q():
        if not qst["prep"]:
            prep()
            a.wait("x")
            a.e(f"v_lshl_or_b32 v{vX0}, v{vX0}, 16, v{vX0}")
            a.e(f"v_lshl_or_b32 v{vX1}, v{vX1}, 16, v{vX1}")
            a.e("s_nop 1")
            qst["prep"] = True
        g0 = qst["done"] * 4
        for t in range(4):
            i = g0 + t
            onehot(vOH + 4 * t, vX0 if i < 16 else vX1, i % 16)
        a.wait(("Q", g0 + 3))
        a.e("s_nop 1")
        for t in range(4):
            i = g0 + t
            cs = "0" if i == 0 else vr(vACC, 4)
            a.e(f"v_mfma_f32_16x16x32_bf16 {vr(vACC,4)}, {vr(vOH+4*t,4)}, {vr(vW+4*i,4)}, {cs}")
        qst["done"] += 1

    def run_seq(seq):
        for ch in seq:
            if ch == "Q":
                issue_q()
            elif ch == "K":
                for _ in range(4):
                    issue_one(args.Dh)
                assert st["issued"] - st["consumed"] <= NP
            elif ch == "k":
                for _ in range(2):
                    issue_one(args.Dh)
                assert st["issued"] - st["consumed"] <= NP
            elif ch == "q":
                issue_q(1)
            elif ch == "x":
                issue_one(args.Dh)
                assert st["issued"] - st["consumed"] <= NP
            elif ch == "B":
                a.e("s_barrier")
            elif ch == "M":
                consume_q()
            elif ch == "O":
                assert wo_state["n"] + 4 <= qst["done"] * 4
                issue_wo(4)
            else:
                raise ValueError(ch)

    def prep():
        lz = a.newlabel("nozero")
        a.e(f"s_and_b32 s{sT}, s{sIDX}, 63")
        a.e(f"s_cmp_lg_u32 s{sT}, 0")
        a.e(f"s_cbranch_scc1 {lz}")
        a.e(f"s_cmp_lg_u32 s{sWAVE}, 0")
        a.e(f"s_cbranch_scc1 {lz}")
        for k in range(4):
            a.e(f"v_mov_b32 v{vU+k}, 0")
        a.e(f"v_lshlrev_b32 v{vU+4}, 4, v{vLANE}")
        a.e(f"s_lshl_b32 s{sT}, s{sGRP}, 12")
        for k in range(4):
            a.e(f"buffer_store_dwordx4 {vr(vU,4)}, v{vU+4}, {sr(sWS,4)}, s{sT} offen offset:{WS_ACC+1024*k} sc1")
        a.e(f"v_lshlrev_b32 v{vU+4}, 7, v{vLANE}")
        a.e(f"s_lshl_b32 s{sT}, s{sGRP}, 13")
        a.e(f"s_add_u32 s{sT}, s{sT}, {WS_LSE}")
        a.e(f"buffer_store_dword v{vU}, v{vU+4}, {sr(sWS,4)}, s{sT} offen sc1")
        a.label(lz)
        a.mark("zst")
        a.e(f"v_and_b32 v{vT0}, 1, v{vC}")
        a.e(f"v_lshlrev_b32 v{vT0}, 4, v{vT0}")
        a.e(f"v_mov_b32 v{vT0+1}, 0xffff")
        a.e(f"v_lshlrev_b32 v{vT0+1}, v{vT0}, v{vT0+1}")
        a.e(f"v_lshrrev_b32 v{vT0+2}, 1, v{vC}")
        for j in range(4):
            a.e(f"v_cmp_eq_u32 vcc, {j}, v{vT0+2}")
            a.e("s_nop 1")
            a.e(f"v_cndmask_b32 v{vMASK+j}, 0, v{vT0+1}, vcc")
        a.e(f"s_mov_b32 s{sM1}, 0xcccccccc")
        a.e(f"s_mov_b32 s{sM1+1}, 0xcccccccc")
        a.e(f"s_mov_b32 s{sM0}, 0xaaaaaaaa")
        a.e(f"s_mov_b32 s{sM0+1}, 0xaaaaaaaa")
        a.e(f"s_mov_b32 s{sCS}, 0x{f32bits(CSCALE):08x}")
        a.e(f"v_lshlrev_b32 v{vT0}, 5, v{vC}")
        a.e(f"v_lshl_add_u32 v{vT0}, v{vR}, 4, v{vT0}")
        a.e(f"s_lshl_b32 s{sT}, s{sWAVE}, 9")
        a.e(f"v_add_u32 v{vT0+1}, s{sT}, v{vT0}")
        a.e(f"s_lshl_b32 s{sZO}, s{sGRP}, 6")
        a.e(f"s_lshl_b32 s{sFO}, s{sIDX}, 7")
        a.e(f"s_add_u32 s{sFO}, s{sFO}, {WS_LSE}")
        a.e(f"s_add_u32 s{sZO}, s{sZO}, 8")
        a.e(f"s_lshl_b32 s{sSHO}, s{sB}, 1")
        a.e(f"s_add_u32 s{sSHO}, s{sSHO}, s{sSPLIT}")
        a.e(f"s_lshl_b32 s{sSHO}, s{sSHO}, 6")
        a.e(f"s_add_u32 s{sSHO}, s{sSHO}, 4")
        a.e(f"s_mov_b32 s{sOK}, 0")
        a.e("s_mov_b64 vcc, -1")
        if args.fc:
            a.e(f"v_mov_b32 v{vZ}, 0")
            a.e(f"v_mov_b32 v{vMODE}, 1")
            a.e(f"ds_write_b32 v{vZ}, v{vMODE} offset:{MODEA}")

    run_seq(args.head)
    assert qst["issued"] == 20
    while qst["done"] < 5:
        consume_q()
    stamp(2)
    a.e("s_nop 7")
    a.e("s_mov_b32 exec_hi, 0")
    a.e(f"ds_write_b128 v{vT0+1}, {vr(vACC,4)} offset:{QP}")
    a.e("s_mov_b64 exec, -1")
    run_seq(args.head2)
    a.e(f"v_lshlrev_b32 v{vT0+2}, 3, v{vLANE}")
    a.e("s_waitcnt lgkmcnt(0)")
    a.e("s_barrier")
    for w in range(W):
        a.e(f"ds_read_b64 {vr(vOH+2*w,2)}, v{vT0+2} offset:{QP+w*512}")
    a.e(f"s_lshl_b32 s{sT}, s{sWAVE}, 8")
    a.e(f"v_lshlrev_b32 v{vT0+2}, 2, v{vLANE}")
    a.e(f"v_add_u32 v{vT0+2}, s{sT}, v{vT0+2}")
    a.e(f"v_lshlrev_b32 v{vT0+3}, 4, v{vC}")
    a.e(f"v_add_u32 v{vT0+3}, s{sT}, v{vT0+3}")
    a.e("s_waitcnt lgkmcnt(0)")
    for k in range(1, W):
        a.e(f"v_add_f32 v{vOH}, v{vOH}, v{vOH+2*k}")
        a.e(f"v_add_f32 v{vOH+1}, v{vOH+1}, v{vOH+2*k+1}")
    a.e(f"v_cvt_pk_bf16_f32 v{vU}, v{vOH}, v{vOH+1}")
    a.e(f"ds_write_b32 v{vT0+2}, v{vU} offset:{QF}")
    a.e("s_waitcnt lgkmcnt(0)")
    a.e(f"ds_read_b128 {vr(vQ,4)}, v{vT0+3} offset:{QF}")
    a.e("s_waitcnt lgkmcnt(0)")
    stamp(3)

    for grp in range(NG):
        i0 = grp * 4
        a.c(f"K group {grp}")
        flow(grp)
        arrive(i0 + 3)
        flow_read(grp)
        if grp == args.g_zset:
            def zset():
                l = a.newlabel("nz")
                a.e(f"s_and_b32 s{sT}, s{sIDX}, 63")
                a.e(f"s_cmp_lg_u32 s{sT}, 0")
                a.e(f"s_cbranch_scc1 {l}")
                a.e(f"s_mov_b32 s{sZF}, 1")
                a.e(f"s_atomic_or s{sZF}, {sr(sOUT+2,2)}, s{sZO} glc")
                a.label(l)
            assert ("mark", "zst") not in a.vm
            wave0(zset, "zs")
        if grp == args.g_zld:
            def zld():
                a.e("s_waitcnt lgkmcnt(0)")
                a.e(f"s_load_dword s{sZF}, {sr(sOUT+2,2)}, s{sZO} glc")
            wave0(zld, "zl")
        for j in range(4):
            for t in range(4):
                cs = "0" if j == 0 else f"v{vT+t}"
                a.e(f"v_dot2_f32_bf16 v{vT+t}, v{slot(i0+t)+j}, v{vQ+j}, {cs}")
        st["consumed"] += 4
        if not args.DT:
            issue_wo(args.wog)
            top_up(DSS)
        a.e("s_nop 2")
        a.e(f"v_add_f32_dpp v{vT}, v{vT}, v{vT} row_ror:8 row_mask:0xf bank_mask:0x3")
        a.e(f"v_add_f32_dpp v{vT+2}, v{vT+2}, v{vT+2} row_ror:8 row_mask:0xf bank_mask:0x3")
        a.e(f"v_add_f32_dpp v{vT}, v{vT+1}, v{vT+1} row_ror:8 row_mask:0xf bank_mask:0xc")
        a.e(f"v_add_f32_dpp v{vT+2}, v{vT+3}, v{vT+3} row_ror:8 row_mask:0xf bank_mask:0xc")
        a.e("s_nop 1")
        gq = grp % 4
        a.e(f"v_add_f32_dpp v{vR2+gq}, v{vT}, v{vT} row_half_mirror row_mask:0xf bank_mask:0x5")
        a.e(f"v_add_f32_dpp v{vR2+gq}, v{vT+2}, v{vT+2} row_half_mirror row_mask:0xf bank_mask:0xa")
        if gq == 3:
            blk = grp // 4
            a.e("s_nop 1")
            for k in range(4):
                a.e(f"v_add_f32_dpp v{vR2+k}, v{vR2+k}, v{vR2+k} quad_perm:[2,3,0,1] {DPPF}")
            a.e(f"v_cndmask_b32 v{vR2}, v{vR2}, v{vR2+1}, {sr(sM1,2)}")
            a.e(f"v_cndmask_b32 v{vR2+2}, v{vR2+2}, v{vR2+3}, {sr(sM1,2)}")
            a.e("s_nop 1")
            a.e(f"v_add_f32_dpp v{vR2}, v{vR2}, v{vR2} quad_perm:[1,0,3,2] {DPPF}")
            a.e(f"v_add_f32_dpp v{vR2+2}, v{vR2+2}, v{vR2+2} quad_perm:[1,0,3,2] {DPPF}")
            a.e(f"v_cndmask_b32 v{vS+blk}, v{vR2}, v{vR2+2}, {sr(sM0,2)}")
        if args.bar and (grp + 1) % args.bar == 0 and grp != NG - 1:
            a.e("s_barrier")

    a.c("softmax")
    stamp(4)
    vM = vU
    a.e(f"v_max_f32 v{vM}, v{vS}, v{vS+1}")
    a.e(f"v_max3_f32 v{vM}, v{vM}, v{vS+2}, v{vS+3}")
    for sh in (8, 4, 2, 1):
        a.e("s_nop 1")
        a.e(f"v_max_f32_dpp v{vM}, v{vM}, v{vM} row_ror:{sh} {DPPF}")
    a.e(f"s_lshl_b32 s{sT}, s{sWAVE}, 4")
    a.e(f"v_lshl_add_u32 v{vT0+2}, v{vR}, 2, s{sT}")
    a.e("s_mov_b32 exec_lo, 0x00010001")
    a.e("s_mov_b32 exec_hi, 0x00010001")
    a.e(f"ds_write_b32 v{vT0+2}, v{vM} offset:{MX}")
    a.e("s_mov_b64 exec, -1")
    a.e(f"v_lshlrev_b32 v{vT0+3}, 3, v{vC}")
    a.e("s_waitcnt lgkmcnt(0)")
    a.e("s_barrier")
    a.e(f"ds_read_b64 {vr(vU+2,2)}, v{vT0+3} offset:{MX}")
    a.e("s_waitcnt lgkmcnt(0)")
    a.e(f"v_max_f32 v{vM}, v{vU+2}, v{vU+3}")
    for sh in (8, 4, 2, 1):
        a.e("s_nop 1")
        a.e(f"v_max_f32_dpp v{vM}, v{vM}, v{vM} row_ror:{sh} {DPPF}")
    vL = vU + 2
    a.e(f"v_mul_f32 v{vMC}, s{sCS}, v{vM}")
    for k in range(NB):
        a.e(f"v_fma_f32 v{vS+k}, v{vS+k}, s{sCS}, -v{vMC}")
    for k in range(NB):
        a.e(f"v_exp_f32 v{vS+k}, v{vS+k}")
    a.e("s_nop 0")
    for k in range(NB):
        a.e(f"v_cvt_pk_bf16_f32 v{vS+k}, v{vS+k}, v{vS+k}")
    for k in range(NB):
        a.e(f"v_and_b32 v{vT+k}, 0xffff0000, v{vS+k}")
    a.e(f"v_add_f32 v{vL}, v{vT}, v{vT+1}")
    a.e(f"v_add_f32 v{vT+2}, v{vT+2}, v{vT+3}")
    a.e(f"v_add_f32 v{vL}, v{vL}, v{vT+2}")
    for sh in (8, 4, 2, 1):
        a.e("s_nop 1")
        a.e(f"v_add_f32_dpp v{vL}, v{vL}, v{vL} row_ror:{sh} {DPPF}")
    a.e("s_mov_b32 exec_lo, 0x00010001")
    a.e("s_mov_b32 exec_hi, 0x00010001")
    a.e(f"ds_write_b32 v{vT0+2}, v{vL} offset:{MX+128}")
    a.e("s_mov_b64 exec, -1")
    a.e("s_waitcnt lgkmcnt(0)")
    a.e("s_barrier")

    def wave0(fn, nm):
        if args.nosync:
            return
        l = a.newlabel(nm)
        a.e(f"s_cmp_lg_u32 s{sWAVE}, 0")
        a.e(f"s_cbranch_scc1 {l}")
        fn()
        a.label(l)

    sDB = sr(sOUT + 2, 2)
    sWB = sr(sOUT + 4, 2)

    def spin_nonzero(reg, base, off, nm):
        lok = a.newlabel(nm + "ok")
        lsp = a.newlabel(nm + "sp")
        a.e(f"s_cmp_lg_u32 s{reg}, 0")
        a.e(f"s_cbranch_scc1 {lok}")
        a.e(f"s_mov_b32 s{sT+3}, 0")
        a.label(lsp)
        a.e(f"s_atomic_or s{reg}, {base}, s{off} glc")
        a.e(f"s_add_u32 s{sT+3}, s{sT+3}, 1")
        a.e(f"s_lshr_b32 s{sT+1}, s{sT+3}, 18")
        a.e("s_waitcnt lgkmcnt(0)")
        a.e(f"s_or_b32 s{sT+1}, s{sT+1}, s{reg}")
        a.e(f"s_cmp_eq_u32 s{sT+1}, 0")
        a.e(f"s_cbranch_scc1 {lsp}")
        a.label(lok)

    def publish_lse():
        a.e(f"ds_read_b64 {vr(vU+2,2)}, v{vT0+3} offset:{MX+128}")
        a.e("s_waitcnt lgkmcnt(0)")
        a.e(f"v_add_f32 v{vL}, v{vU+2}, v{vU+3}")
        for sh in (8, 4, 2, 1):
            a.e("s_nop 1")
            a.e(f"v_add_f32_dpp v{vL}, v{vL}, v{vL} row_ror:{sh} {DPPF}")
        a.e(f"v_log_f32 v{vL}, v{vL}")
        a.e("s_nop 0")
        a.e(f"v_add_f32 v{vL}, v{vL}, v{vMC}")
        a.e("s_nop 0")
        a.e(f"v_readfirstlane_b32 s{sLSE}, v{vL}")
        spin_nonzero(sZF, sDB, sZO, "z")
        a.e(f"s_not_b32 s{sPAY}, s{sLSE}")
        a.e(f"s_max_u32 s{sPAY}, s{sPAY}, 1")
        a.e(f"s_atomic_swap s{sPAY}, {sWB}, s{sFO} glc")
    wave0(publish_lse, "pub")

    def load_payload():
        a.e("s_waitcnt lgkmcnt(0)")
        a.e(f"s_xor_b32 s{sFO}, s{sFO}, 128")
        a.e(f"s_load_dword s{sPAY}, {sWB}, s{sFO} glc")

    def finish_factor():
        a.e("s_waitcnt lgkmcnt(0)")
        spin_nonzero(sPAY, sWB, sFO, "p")
        a.e(f"s_not_b32 s{sPAY}, s{sPAY}")
        a.e(f"v_mov_b32 v{vU+2}, s{sPAY}")
        a.e(f"v_max_f32 v{vU}, s{sLSE}, v{vU+2}")
        a.e(f"v_sub_f32 v{vU+1}, s{sLSE}, v{vU}")
        a.e(f"v_sub_f32 v{vU+2}, v{vU+2}, v{vU}")
        a.e(f"v_sub_f32 v{vU+3}, v{vMC}, v{vU}")
        a.e(f"v_exp_f32 v{vU+1}, v{vU+1}")
        a.e(f"v_exp_f32 v{vU+2}, v{vU+2}")
        a.e(f"v_exp_f32 v{vU+3}, v{vU+3}")
        a.e(f"v_add_f32 v{vU+1}, v{vU+1}, v{vU+2}")
        a.e(f"v_rcp_f32 v{vU+1}, v{vU+1}")
        a.e(f"v_mov_b32 v{vU+4}, 0")
        a.e(f"v_mul_f32 v{vU+1}, v{vU+1}, v{vU+3}")
        a.e("s_mov_b64 exec, 1")
        a.e(f"ds_write_b32 v{vU+4}, v{vU+1} offset:{QP}")
        a.e("s_mov_b64 exec, -1")

    vNA, vNB, vCNT, vAO = vQ, vQ + 1, vQ + 2, vQ + 3
    sMD = sM1
    a.e(f"s_mov_b32 s{sMD}, 0x07fe07fe")
    a.e(f"s_mov_b32 s{sMD+1}, 0x07fe07fe")
    a.e(f"s_lshl_b32 s{sT}, s{sWAVE}, 3")
    a.e(f"v_add_u32 v{vNA}, s{sT}, v{vR}")
    a.e(f"v_mul_u32_u24 v{vNA}, 10, v{vNA}")
    a.e(f"v_add3_u32 v{vNA}, v{vNA}, v{vC}, -1")
    a.e(f"v_max_i32 v{vNA}, 0, v{vNA}")
    a.e(f"v_lshlrev_b32 v{vNA}, 2, v{vNA}")
    a.e(f"v_add_u32 v{vNB}, 160, v{vNA}")
    a.e(f"v_min_u32 v{vCNT}, 1, v{vC}")
    a.e(f"v_cvt_f32_u32 v{vCNT}, v{vCNT}")
    a.e(f"v_sub_f32 v{vCNT}, 1.0, v{vCNT}")
    a.e(f"s_lshl_b32 s{sT}, s{sWAVE}, 9")
    a.e(f"v_lshl_add_u32 v{vAO}, v{vLANE}, 2, s{sT}")
    for grp in range(NG):
        i0 = NG * 4 + grp * 4
        blk = grp // 4
        a.c(f"V group {grp}")
        flow(NG + grp)
        for t in range(4):
            onehot(vOH + 4 * t, vS + blk, bitrev4((grp % 4) * 4 + t))
        arrive(i0 + 3)
        flow_read(NG + grp)
        a.e("s_nop 1")
        for t in range(4):
            cs = "0" if (grp == 0 and t == 0) else vr(vACC, 4)
            a.e(f"v_mfma_f32_16x16x32_bf16 {vr(vACC,4)}, {vr(vOH+4*t,4)}, {vr(slot(i0+t),4)}, {cs}")
        st["consumed"] += 4
        if not args.DT:
            top_up(DSS)
        if grp == args.g_load:
            wave0(load_payload, "ldp")
        if grp == args.g_fin:
            wave0(finish_factor, "fin")
        if args.bar and (grp + 1) % args.bar == 0 and grp != NG - 1:
            a.e("s_barrier")

    assert wo_state["n"] == 20
    a.c("epilogue")
    stamp(5)
    a.e("s_nop 7")
    a.e("s_mov_b32 exec_hi, 0")
    a.e(f"ds_write_b128 v{vT0+1}, {vr(vACC,4)} offset:{OP}")
    a.e("s_mov_b64 exec, -1")
    a.e(f"v_lshrrev_b32 v{vT0+2}, 2, v{vC}")
    a.e(f"v_and_b32 v{vT0+3}, 3, v{vC}")
    a.e(f"v_lshl_add_u32 v{vT0+3}, v{vT0+3}, 2, v{vR}")
    a.e(f"s_lshl_b32 s{sT}, s{sWAVE}, 4")
    a.e(f"v_add_u32 v{vT0+3}, s{sT}, v{vT0+3}")
    a.e(f"v_lshlrev_b32 v{vT0+3}, 2, v{vT0+3}")
    a.e(f"v_lshl_add_u32 v{vT0+3}, v{vT0+2}, 10, v{vT0+3}")
    a.e(f"v_mov_b32 v{vU+4}, 0")
    a.e("s_waitcnt lgkmcnt(0)")
    a.e("s_barrier")
    a.e(f"ds_read2st64_b32 {vr(vU,2)}, v{vT0+3} offset0:{OP//256} offset1:{OP//256+2}")
    a.e(f"ds_read_b32 v{vU+2}, v{vU+4} offset:{QP}")
    assert OP % 256 == 0
    a.e(f"s_mul_i32 s{sT}, s{sWAVE}, 2560")
    a.e(f"v_add_u32 v{vT0+2}, s{sT}, v{vT0}")
    a.e("s_waitcnt lgkmcnt(0)")
    a.e(f"v_add_f32 v{vU}, v{vU}, v{vU+1}")
    for sh in (4, 8):
        a.e("s_nop 1")
        a.e(f"v_add_f32_dpp v{vU}, v{vU}, v{vU} row_ror:{sh} {DPPF}")
    a.e(f"v_mul_f32 v{vU}, v{vU}, v{vU+2}")
    a.e(f"v_cvt_pk_bf16_f32 v{vU}, v{vU}, v{vU}")
    a.e("s_nop 1")
    for rg in range(RG):
        onehot(vOH + 4 * rg, vU, rg)
    a.wait([("wo", i) for i in range(20)])
    a.e("s_nop 1")
    for rg in range(RG):
        for seg in range(5):
            cs = "0" if rg == 0 else vr(vY + 4 * seg, 4)
            a.e(f"v_mfma_f32_16x16x32_bf16 {vr(vY+4*seg,4)}, {vr(vOH+4*rg,4)}, {vr(vW+4*(rg*5+seg),4)}, {cs}")
    stamp(6)
    a.e("s_mov_b32 exec_hi, 0")
    a.e(f"s_lshl_b32 s{sT+2}, s{sGRP}, 12")
    a.e(f"s_mul_i32 s{sT+3}, s{sB}, 2560")
    a.e(f"s_mul_i32 s{sT+1}, s{sBLK}, 1280")
    a.e(f"s_add_u32 s{sT+3}, s{sT+3}, s{sT+1}")
    for seg in range(5):
        a.e(f"ds_write_b128 v{vT0+2}, {vr(vY+4*seg,4)} offset:{YP+seg*512}")
    a.e("s_mov_b64 exec, -1")
    a.e("s_waitcnt lgkmcnt(0)")
    a.e("s_barrier")
    assert YP % 256 == 0
    for m, reg in ((0, vNA), (1, vNB)):
        for k in range(4):
            a.e(f"ds_read2st64_b32 {vr(vW+8*m+2*k,2)}, v{reg} offset0:{YP//256+k*20} offset1:{YP//256+k*20+10}")
    for m in range(2):
        a.e(f"s_waitcnt lgkmcnt({4-4*m})")
        b = vW + 8 * m
        for k in range(4):
            a.e(f"v_add_f32 v{b+2*k}, v{b+2*k}, v{b+2*k+1}")
        a.e(f"v_add_f32 v{b}, v{b}, v{b+2}")
        a.e(f"v_add_f32 v{b+4}, v{b+4}, v{b+6}")
        a.e(f"v_add_f32 v{b}, v{b}, v{b+4}")
        a.e(f"v_cndmask_b32 v{b}, v{vCNT}, v{b}, {sr(sMD,2)}")
        a.e(f"v_mov_b32 v{b+1}, v{b}")
        a.e(f"buffer_atomic_add_f32 v{b+1}, v{vAO}, {sr(sWS,4)}, s{sT+2} offen offset:{WS_ACC+256*m} sc0")
    for m, reg in ((0, vNA), (1, vNB)):
        b = vW + 8 * m
        l = a.newlabel("nst")
        if m == 0:
            a.e("s_waitcnt vmcnt(0)")
        a.e(f"v_mov_b32_dpp v{b+2}, v{b+1} row_newbcast:0 {DPPF}")
        a.e(f"v_add_f32 v{b}, v{b}, v{b+1}")
        a.e(f"v_cmp_eq_f32 vcc, 0x427c0000, v{b+2}")
        a.e(f"v_cvt_pk_bf16_f32 v{b}, v{b}, v{b}")
        a.e(f"v_lshrrev_b32 v{b+3}, 1, v{reg}")
        a.e(f"s_and_b64 exec, vcc, {sr(sMD,2)}")
        a.e(f"s_cbranch_execz {l}")
        a.e(f"buffer_store_short v{b}, v{b+3}, {sr(sO,4)}, s{sT+3} offen")
        a.label(l)
        a.e("s_mov_b64 exec, -1")
    a.label("L_end")
    if inst:
        a.e("s_mov_b64 exec, -1")
        stamp(7)
        a.e(f"s_getreg_b32 s{sT+1}, hwreg(HW_REG_XCC_ID)")
        a.e(f"s_getreg_b32 s{sT+2}, hwreg(HW_REG_HW_ID)")
        a.e("s_waitcnt lgkmcnt(0)")
        a.e(f"v_mov_b32 v{vU}, 0")
        for k in range(8):
            a.e(f"v_writelane_b32 v{vU}, s{sST+2*k}, {k}")
        a.e(f"v_writelane_b32 v{vU}, s{sT+1}, 14")
        a.e(f"v_writelane_b32 v{vU}, s{sT+2}, 15")
        a.e(f"s_mul_i32 s{sT}, s{sWG}, {W}")
        a.e(f"s_add_u32 s{sT}, s{sT}, s{sWAVE}")
        a.e(f"s_lshl_b32 s{sT}, s{sT}, 6")
        a.e(f"s_add_u32 s{sT}, s{sT}, {WS_ST}")
        a.e(f"v_lshlrev_b32 v{vU+1}, 2, v{vLANE}")
        a.e("s_mov_b64 exec, 0xffff")
        a.e(f"buffer_store_dword v{vU}, v{vU+1}, {sr(sWS,4)}, s{sT} offen")
        if args.dbgt:
            a.e(f"s_cmp_lg_u32 s{sWAVE}, 0")
            a.e("s_cbranch_scc1 L_exit")
            a.e(f"s_not_b32 s{sT+1}, s{sST}")
            a.e(f"s_not_b32 s{sT+2}, s{sST+14}")
            a.e(f"v_mov_b32 v{vU+2}, 0")
            a.e(f"v_mov_b32 v{vU+3}, 0")
            items = [(1, sT+1), (2, sST+6), (3, sST+8), (12, sST+10), (13, sST+14), (14, sT+2), (15, sST+2)]
            for k, (dw, sreg) in enumerate(items):
                a.e(f"v_writelane_b32 v{vU+2}, s{sreg}, {k}")
                a.e(f"s_mov_b32 s{sT+3}, {dw*4}")
                a.e(f"v_writelane_b32 v{vU+3}, s{sT+3}, {k}")
            a.e("s_mov_b64 exec, 0x7f")
            a.e(f"buffer_atomic_umax v{vU+2}, v{vU+3}, {sr(sDBG,4)}, 0 offen")
    a.label("L_exit")
    a.e("s_endpgm")

    acc = (VGPRS + 3) // 4 * 4
    a.raw('.section .rodata,"a"')
    a.raw(".p2align 6")
    a.raw(f""".amdhsa_kernel {KNAME}
  .amdhsa_next_free_vgpr {VGPRS}
  .amdhsa_next_free_sgpr {SGPRS}
  .amdhsa_accum_offset {acc}
  .amdhsa_group_segment_fixed_size 0
  .amdhsa_kernarg_size 104
  .amdhsa_user_sgpr_count 2
  .amdhsa_user_sgpr_kernarg_segment_ptr 1
  .amdhsa_system_sgpr_workgroup_id_x 1
  .amdhsa_float_denorm_mode_32 3
.end_amdhsa_kernel
""")
    return finalize(a.text(), args)


if __name__ == "__main__":
    ap = argparse.ArgumentParser()
    ap.add_argument("-o", default=f"cdna_kernels/{NAME}.s")
    ap.add_argument("--NP", type=int, default=28)
    ap.add_argument("--D", type=int, default=6)
    ap.add_argument("--lr", type=int, default=2)
    ap.add_argument("--pat", default="0123568974+44")
    ap.add_argument("--bar", type=int, default=4)
    ap.add_argument("--hbar", type=int, default=1)
    ap.add_argument("--wo0", type=int, default=0)
    ap.add_argument("--wo1", type=int, default=0)
    ap.add_argument("--wog", type=int, default=2)
    ap.add_argument("--head", default="QKQKQKQKQK")
    ap.add_argument("--head2", default="KK")
    ap.add_argument("--K0", type=int, default=8)
    ap.add_argument("--K1", type=int, default=16)
    ap.add_argument("--g_set", type=int, default=1)
    ap.add_argument("--g_load", type=int, default=12)
    ap.add_argument("--g_check", type=int, default=12)
    ap.add_argument("--inst", type=int, default=0)
    ap.add_argument("--DT", type=int, default=4)
    ap.add_argument("--fc", type=int, default=0)
    ap.add_argument("--pol", default="nnnnnnnn")
    ap.add_argument("--kh", default="nt")
    ap.add_argument("--wh", default="nt")
    ap.add_argument("--map", type=int, default=0)
    ap.add_argument("--xm", default="0")
    ap.add_argument("--DS", type=int, default=3)
    ap.add_argument("--theta", type=int, default=24)
    ap.add_argument("--fg0", type=int, default=8)
    ap.add_argument("--fg1", type=int, default=28)
    ap.add_argument("--fp", type=int, default=2)
    ap.add_argument("--g_fin", type=int, default=14)
    ap.add_argument("--g_zset", type=int, default=3)
    ap.add_argument("--g_zld", type=int, default=13)
    ap.add_argument("--boost", type=int, default=0)
    ap.add_argument("--b0", type=int, default=36)
    ap.add_argument("--b1", type=int, default=56)
    ap.add_argument("--rot", type=int, default=0)
    ap.add_argument("--cu", type=int, default=1)
    ap.add_argument("--Dh", type=int, default=0)
    ap.add_argument("--wot", type=int, default=2)
    ap.add_argument("--noq", type=int, default=0)
    ap.add_argument("--noo", type=int, default=0)
    ap.add_argument("--nosync", type=int, default=0)
    ap.add_argument("--dbgt", type=int, default=0)
    args = ap.parse_args()
    open(args.o, "w").write(gen(args))
```

```python
import sys, math, struct, argparse

NAME = "concat_heads__gqa_block_cached__gqa_block_cached__decode"
KNAME = NAME + "_kernel"


def f32bits(x):
    return struct.unpack("<I", struct.pack("<f", x))[0]


def bitrev4(t):
    return ((t & 1) << 3) | ((t & 2) << 1) | ((t & 4) >> 1) | ((t & 8) >> 3)


class Asm:
    def __init__(self):
        self.lines = []
        self.vm = []
        self.nlabel = 0

    def e(self, s):
        self.lines.append("    " + s)

    def c(self, s):
        self.lines.append("    ; " + s)

    def label(self, s):
        self.lines.append(s + ":")

    def newlabel(self, base):
        self.nlabel += 1
        return f"L_{base}_{self.nlabel}"

    def raw(self, s):
        self.lines.append(s)

    def vmem(self, s, tag):
        self.e(s)
        self.vm.append(tag)
        assert len(self.vm) <= 58, "too many outstanding vmem ops"

    def mark(self, tag):
        self.vm.append(("mark", tag))

    def count_after(self, tag):
        idx = max(i for i, t in enumerate(self.vm) if t == tag)
        return sum(1 for t in self.vm[idx + 1:] if not (isinstance(t, tuple) and t[0] == "mark"))

    def wait(self, tags):
        if not isinstance(tags, (list, set)):
            tags = [tags]
        last = -1
        for i, t in enumerate(self.vm):
            if t in tags:
                last = i
        if last < 0:
            return
        n = sum(1 for t in self.vm[last + 1:] if not (isinstance(t, tuple) and t[0] == "mark"))
        self.e(f"s_waitcnt vmcnt({n})")
        self.vm = self.vm[last + 1:]

    def limit(self, n):
        real = [i for i, t in enumerate(self.vm) if not (isinstance(t, tuple) and t[0] == "mark")]
        if len(real) <= n:
            return
        last = real[len(real) - n - 1]
        self.e(f"s_waitcnt vmcnt({n})")
        self.vm = self.vm[last + 1:]

    def text(self):
        return "\n".join(self.lines) + "\n"


def vr(a, n=1):
    return f"v{a}" if n == 1 else f"v[{a}:{a+n-1}]"


def sr(a, n=1):
    return f"s{a}" if n == 1 else f"s[{a}:{a+n-1}]"


def finalize(text, args):
    import re
    pol = args.pol
    assert len(pol) == 8

    def sub(body, p4):
        for ch, c in zip("KVQO", p4):
            body = body.replace("@H" + ch, " nt" if c == "n" else "")
        return body
    if pol[:4] == pol[4:]:
        return sub(text, pol[:4])
    k0 = text.index("    s_cbranch_scc1 L_exit\n") + len("    s_cbranch_scc1 L_exit\n")
    k1 = text.index("L_exit:\n")
    head, body, tail = text[:k0], text[k0:k1], text[k1:]
    bit = {0: 2, 1: 5, 2: 7}[args.map]
    ren = lambda b, sfx: re.sub(r"\bL_(?!exit)(\w+)", lambda m: "L_" + m.group(1) + sfx, b)
    out = head + f"    s_bitcmp1_b32 s2, {bit}\n    s_cbranch_scc1 L_bodyB\n"
    out += ren(sub(body, pol[:4]), "_a") + "    s_endpgm\nL_bodyB:\n" + ren(sub(body, pol[4:]), "_b") + tail
    return out


def gen(args):
    a = Asm()
    W = 8
    NP = args.NP
    DSS = args.D
    inst = args.inst
    hint = (" " + args.wh) if args.wh else ""
    khint = (" " + args.kh) if args.kh else ""
    NG = 16
    NB = 4
    NWQ = 20
    RG = 4
    CSCALE = (128 ** -0.5) * math.log2(math.e)
    LR = args.lr

    QP = 0
    QF = QP + W * 512
    MX = QF + W * 256
    LS = MX + 64
    FF = LS + 64
    OP = MX + 256
    YP = OP + W * 512
    MODEA = YP + W * 2560
    LDS_BYTES = MODEA + 64

    WS_ACC = 0
    WS_LSE = 65536
    WS_FL = 131072
    WS_ST = 4 * 1024 * 1024
    DBG_FLAG = 16
    DBG_ZERO = 80

    vTID, vLANE, vC, vR, vKOFF, vWQOFF, vWOOFF, vXOFF, vX0, vX1 = range(10)
    vT0 = 10
    vKOFF2 = 15
    vZ = 14
    vMODE = 55
    vQ = 16
    vMASK = 20
    vACC = 24
    vS = 28
    vOH = 32
    vT = vOH
    vR2 = vOH + 4
    vU = 48
    vBUF = 56
    vW = vBUF + NP * 4
    vY = vBUF
    VGPRS = vW + NWQ * 4
    assert VGPRS <= 256, VGPRS
    vLSE = vX0
    vFLG = vX1
    vPAY = vXOFF
    vMC = vWQOFF

    sWG = 2
    sKA = 4
    sP = 8
    sOUT = 20
    sBLK, sH, sB, sSPLIT, sWAVE, sIDX = 26, 27, 28, 29, 30, 31
    sK, sV, sWQ, sWO, sX, sWS = 32, 36, 40, 44, 48, 52
    sOFF = 56
    sT = 57
    sM1, sM0 = 64, 66
    sCS = 68
    sGRP = 69
    sOK = 70
    sQO = 71
    sDBG = 72
    sO = 76
    sLSE, sPAY, sFLG, sZF, sREP, sFO, sZO, sSHO = 6, 7, 18, 19, 3, 62, 63, 61
    sXO, sKO = 72, 73
    sST = 80
    SGPRS = 80 if not inst else 100

    def stamp(k):
        if inst:
            a.e(f"s_memrealtime s[{sST+2*k}:{sST+2*k+1}]")

    DPPF = "row_mask:0xf bank_mask:0xf"

    a.raw("; generated by gen/gen5.py (fused decode attention: q-proj + flash-decoding + out-proj)")
    a.raw(f"; @launch grid=(256,1,1) block=({W*64},1,1) lds={LDS_BYTES}")
    a.raw('.amdgcn_target "amdgcn-amd-amdhsa--gfx950"')
    a.raw(".text")
    a.raw(f".globl {KNAME}")
    a.raw(".p2align 8")
    a.raw(f".type {KNAME},@function")
    a.label(KNAME)
    a.e(f"s_cmp_ge_u32 s{sWG}, 256")
    a.e("s_cbranch_scc1 L_exit")
    stamp(0)
    if args.scr:
        a.e(f"s_and_b32 s{sT}, s{sWG}, 3")
        a.e(f"s_lshl_b32 s{sT}, s{sT}, 3")
        a.e(f"s_bfe_u32 s{sT+1}, s{sWG}, 0x30002")
        a.e(f"s_or_b32 s{sT}, s{sT}, s{sT+1}")
        a.e(f"s_andn2_b32 s{sWG}, s{sWG}, 31")
        a.e(f"s_or_b32 s{sWG}, s{sWG}, s{sT}")
    a.e(f"s_and_b32 s{sT}, s{sWG}, 7")
    if args.map == 0:
        a.e(f"s_lshr_b32 s{sBLK}, s{sT}, 2")
    elif args.map in (1, 3):
        a.e(f"s_bfe_u32 s{sBLK}, s{sWG}, 0x10005")
        if args.map == 3:
            a.e(f"s_xor_b32 s{sT}, s{sT}, s{sBLK}")
    elif args.map == 4:
        a.e(f"s_and_b32 s{sBLK}, s{sWG}, 1")
        a.e(f"s_lshr_b32 s{sT}, s{sT}, 1")
    elif args.map == 5:
        a.e(f"s_bfe_u32 s{sBLK}, s{sWG}, 0x10001")
        a.e(f"s_lshr_b32 s{sT+1}, s{sT}, 2")
        a.e(f"s_lshl_b32 s{sT+1}, s{sT+1}, 1")
        a.e(f"s_and_b32 s{sT}, s{sT}, 1")
        a.e(f"s_or_b32 s{sT}, s{sT}, s{sT+1}")
    else:
        a.e(f"s_lshr_b32 s{sBLK}, s{sWG}, 7")
    a.e(f"s_mul_i32 s{sT+3}, s{sBLK}, 40")
    a.e(f"s_add_u32 s{sKA}, s0, s{sT+3}")
    a.e(f"s_addc_u32 s{sKA+1}, s1, 0")
    a.e(f"s_load_dwordx8 {sr(sP,8)}, {sr(sKA,2)}, 0")
    a.e(f"s_load_dwordx2 {sr(sP+8,2)}, {sr(sKA,2)}, 32")
    a.e(f"s_load_dwordx4 {sr(sOUT,4)}, s[0:1], 80")
    a.e(f"s_load_dwordx2 {sr(sOUT+4,2)}, s[0:1], 96")
    a.e(f"s_lshr_b32 s{sT+1}, s{sWG}, 3")
    if args.map in (0, 4, 5):
        a.e(f"s_lshl_b32 s{sT}, s{sT}, 3")
        a.e(f"s_lshr_b32 s{sT+2}, s{sT+1}, 2")
        a.e(f"s_add_u32 s{sT}, s{sT}, s{sT+2}")
        a.e(f"s_and_b32 s{sH}, s{sT}, 31")
    elif args.map in (1, 3):
        a.e(f"s_lshl_b32 s{sT}, s{sT}, 2")
        a.e(f"s_lshr_b32 s{sT+2}, s{sT+1}, 3")
        a.e(f"s_add_u32 s{sH}, s{sT}, s{sT+2}")
    else:
        a.e(f"s_lshl_b32 s{sT}, s{sT}, 2")
        a.e(f"s_bfe_u32 s{sT+2}, s{sT+1}, 0x20002")
        a.e(f"s_add_u32 s{sH}, s{sT}, s{sT+2}")
    a.e(f"s_lshr_b32 s{sB}, s{sT+1}, 1")
    a.e(f"s_and_b32 s{sB}, s{sB}, 1")
    a.e(f"s_and_b32 s{sSPLIT}, s{sT+1}, 1")
    a.e(f"v_and_b32 v{vLANE}, 63, v{vTID}")
    a.e(f"v_lshrrev_b32 v{vT0}, 6, v{vTID}")
    a.e(f"v_and_b32 v{vC}, 15, v{vTID}")
    a.e(f"v_readfirstlane_b32 s{sWAVE}, v{vT0}")
    a.e(f"v_lshrrev_b32 v{vR}, 4, v{vLANE}")
    a.e(f"s_lshl_b32 s{sGRP}, s{sBLK}, 1")
    a.e(f"s_add_u32 s{sGRP}, s{sGRP}, s{sB}")
    a.e(f"s_lshl_b32 s{sIDX}, s{sGRP}, 5")
    a.e(f"s_add_u32 s{sIDX}, s{sIDX}, s{sH}")
    a.e(f"s_lshl_b32 s{sIDX}, s{sIDX}, 1")
    a.e(f"s_add_u32 s{sIDX}, s{sIDX}, s{sSPLIT}")
    PT = [int(ch) for ch in args.pat[:10]]
    assert sorted(PT) == list(range(10))
    COL = [0] * 10
    for k, src in enumerate([0, 1, 6, 7, 8, 2, 3, 4, 5, 9]):
        COL[src] = 1 << PT[k]
    r = args.pat[10:]
    while r:
        assert r[0] == "+"
        COL[int(r[1])] ^= 1 << int(r[2])
        r = r[3:]
    WSMASK = COL[6] | COL[7] | COL[8] | COL[9]
    a.e(f"v_lshlrev_b32 v{vKOFF}, 4, v{vLANE}")
    a.e(f"s_mul_i32 s{sT}, s{sSPLIT}, {COL[9] << 10}")
    for k in range(3):
        a.e(f"s_bfe_u32 s{sT+1}, s{sWAVE}, 0x{(1<<16)|k:x}")
        a.e(f"s_mul_i32 s{sT+1}, s{sT+1}, {COL[6+k] << 10}")
        a.e(f"s_xor_b32 s{sT}, s{sT}, s{sT+1}")
    XM = int(args.xm, 16)
    if XM:
        a.e(f"s_mov_b32 s{sXO}, 0")
        srcs = [(sSPLIT, 0), (sB, 0)] + [(sH, k) for k in range(5)] + [(sBLK, 0)]
        for k, (reg, bit) in enumerate(srcs):
            nib = (XM >> (4 * k)) & 15
            if not nib:
                continue
            cst = 0
            for j in range(4):
                if (nib >> j) & 1:
                    cst ^= COL[2 + j]
            assert cst & 3 == 0
            a.e(f"s_bitcmp1_b32 s{reg}, {bit}")
            a.e(f"s_cselect_b32 s{sT+1}, {cst << 10}, 0")
            a.e(f"s_xor_b32 s{sXO}, s{sXO}, s{sT+1}")
        a.e(f"s_and_b32 s{sT+1}, s{sXO}, {WSMASK << 10}")
        a.e(f"s_xor_b32 s{sT}, s{sT}, s{sT+1}")
        a.e(f"s_andn2_b32 s{sXO}, s{sXO}, {WSMASK << 10}")
    a.e(f"v_add_u32 v{vKOFF}, s{sT}, v{vKOFF}")

    def tile_T(t):
        T = 0
        for k in range(6):
            if (t >> k) & 1:
                T ^= COL[k]
        return T
    OVL = sorted(set(tile_T(t) & WSMASK for t in range(64)))
    assert len(OVL) <= 2
    KOFFREG = {0: vKOFF}
    if len(OVL) == 2:
        KOFFREG[OVL[1]] = vKOFF2
        a.e(f"v_xor_b32 v{vKOFF2}, {OVL[1] << 10}, v{vKOFF}")
    a.e(f"s_mul_i32 s{sT}, s{sWAVE}, {NWQ*4}")
    a.e(f"v_add_u32 v{vWQOFF}, s{sT}, v{vR}")
    a.e(f"v_lshlrev_b32 v{vWQOFF}, 13, v{vWQOFF}")
    a.e(f"v_lshl_add_u32 v{vWQOFF}, v{vC}, 4, v{vWQOFF}")
    if args.rot:
        a.e(f"s_lshl_b32 s{sQO}, s{sB}, 1")
        a.e(f"s_add_u32 s{sQO}, s{sQO}, s{sSPLIT}")
        a.e(f"s_mul_i32 s{sQO}, s{sQO}, 5")
        for reg, add in ((vXOFF, 0), (vX1, 16)):
            a.e(f"v_add_u32 v{reg}, s{sQO}, v{vC}")
            if add:
                a.e(f"v_add_u32 v{reg}, {add}, v{reg}")
            for _ in range(2 if add else 1):
                a.e(f"v_subrev_u32 v{vT0}, 20, v{reg}")
                a.e(f"v_min_u32 v{reg}, v{reg}, v{vT0}")
            a.e(f"v_lshl_add_u32 v{reg}, v{reg}, 2, v{vR}")
            a.e(f"v_add_u32 v{reg}, s{sT}, v{reg}")
            a.e(f"v_lshlrev_b32 v{reg}, 1, v{reg}")
        a.e(f"s_lshl_b32 s{sQO}, s{sQO}, 15")
    else:
        a.e(f"v_lshl_add_u32 v{vXOFF}, v{vC}, 2, v{vR}")
        a.e(f"v_add_u32 v{vXOFF}, s{sT}, v{vXOFF}")
        a.e(f"v_lshlrev_b32 v{vXOFF}, 1, v{vXOFF}")
        a.e(f"v_add_u32 v{vX1}, 128, v{vXOFF}")
    a.e(f"s_mul_i32 s{sT}, s{sWAVE}, {RG*4}")
    a.e(f"v_add_u32 v{vWOOFF}, s{sT}, v{vR}")
    a.e(f"v_mul_u32_u24 v{vWOOFF}, 1280, v{vWOOFF}")
    a.e(f"v_lshl_add_u32 v{vWOOFF}, v{vC}, 4, v{vWOOFF}")
    a.e("s_waitcnt lgkmcnt(0)")
    stamp(1)
    a.e(f"s_mul_i32 s{sT}, s{sB}, 1280")
    a.e(f"s_add_u32 s{sX}, s{sP}, s{sT}")
    a.e(f"s_addc_u32 s{sX+1}, s{sP+1}, 0")
    a.e(f"s_mov_b32 s{sX+2}, 1280")
    a.e(f"s_mov_b32 s{sX+3}, 0x20000")
    a.e(f"s_lshl_b32 s{sT}, s{sH}, 8")
    a.e(f"s_add_u32 s{sWQ}, s{sP+6}, s{sT}")
    a.e(f"s_addc_u32 s{sWQ+1}, s{sP+7}, 0")
    a.e(f"s_sub_u32 s{sWQ+2}, {640*8192}, s{sT}")
    a.e(f"s_mov_b32 s{sWQ+3}, 0x20000")

    stream = [("K", t) for t in range(NG * 4)] + [("V", t) for t in range(NG * 4)]
    st = {"issued": 0, "consumed": 0, "soff": None}

    def set_soff(v):
        if v == 0:
            return "0"
        if st["soff"] != v:
            a.e(f"s_mov_b32 s{sOFF}, {v}")
            st["soff"] = v
        return f"s{sOFF}"

    def slot(i):
        return vBUF + (i % NP) * 4

    def issue_one(lim=0):
        if lim:
            a.limit(lim - 1)
        i = st["issued"]
        kind, t = stream[i]
        buf = slot(i)
        if True:
            srd = sK if kind == "K" else sV
            T = tile_T(t)
            koff = KOFFREG[T & WSMASK]
            off = (T & ~WSMASK) << 10
            imm = off % 4096
            if XM:
                if st.get("koff") != off - imm:
                    a.e(f"s_xor_b32 s{sKO}, s{sXO}, {off - imm}")
                    st["koff"] = off - imm
                sos = f"s{sKO}"
            else:
                sos = set_soff(off - imm)
            immS = f" offset:{imm}" if imm else ""
            a.vmem(f"buffer_load_dwordx4 {vr(buf,4)}, v{koff}, {sr(srd,4)}, {sos} offen{immS}@H{kind}", ("S", i))
        st["issued"] = i + 1

    def top_up(limit):
        limit = min(limit, NP)
        while st["issued"] < len(stream) and st["issued"] - st["consumed"] < limit:
            issue_one()

    def arrive(i_last):
        if not args.DT:
            a.wait(("S", i_last))
            return
        def one():
            if wo_state["n"] < 20 and args.wot and st["issued"] % args.wot == 0 and qst["done"] == 5:
                issue_wo(1)
            issue_one()
        if st["issued"] - (i_last + 1) >= args.DT:
            n = args.cu if st.get("primed") else args.DT
            for _ in range(n):
                if st["issued"] < len(stream) and st["issued"] - st["consumed"] < NP:
                    a.limit(args.DT - 1)
                    one()
                    st["primed"] = True
            a.wait(("S", i_last))
            return
        for i in range(i_last - 3, i_last + 1):
            a.wait(("S", i))
            while st["issued"] < len(stream) and st["issued"] - (i + 1) < args.DT and st["issued"] - st["consumed"] < NP:
                if args.fc and fcs["on"] and True:
                    l = a.newlabel("sh")
                    a.e(f"s_cbranch_vccnz {l}")
                    a.e(f"s_waitcnt vmcnt({args.DS - 1})")
                    a.label(l)
                one()

    fcs = {"on": False, "k": 0, "pend": None, "rd": False}

    def flow(G):
        if not args.fc:
            return
        if fcs["rd"]:
            a.e("s_waitcnt lgkmcnt(0)")
            a.e(f"v_readfirstlane_b32 s{sT}, v{vMODE}")
            a.e("s_nop 3")
            a.e(f"s_cmp_lg_u32 s{sT}, 0")
            a.e("s_cselect_b64 vcc, -1, 0")
            fcs["on"] = True
            fcs["rd"] = False
        if fcs["pend"] is not None:
            k = fcs["pend"]
            def wr():
                a.e("s_waitcnt lgkmcnt(0)")
                a.e(f"s_cmp_ge_u32 s{sREP}, {args.theta}")
                a.e(f"s_cselect_b32 s{sT}, 1, 0")
                a.e(f"v_mov_b32 v{vMODE}, s{sT}")
                a.e(f"ds_write_b32 v{vZ}, v{vMODE} offset:{MODEA}")
            wave0(wr, "fw")
            fcs["pend"] = None
        if G >= args.fg0 and G <= args.fg1 and (G - args.fg0) % args.fp == 0:
            def rep():
                l = a.newlabel("nf")
                a.e("s_waitcnt lgkmcnt(0)")
                a.e(f"s_mov_b32 s{sREP}, 8")
                a.e(f"s_cmp_eq_u32 s{sOK}, 0")
                a.e(f"s_cbranch_scc1 {l}")
                a.e(f"s_mov_b32 s{sREP}, 1")
                a.e(f"s_atomic_add s{sREP}, {sr(sOUT+4,2)}, s{sSHO} glc")
                a.label(l)
                a.e(f"s_add_u32 s{sSHO}, s{sSHO}, 8192")
            wave0(rep, "fr")
            fcs["pend"] = fcs["k"]
            fcs["k"] += 1

    def flow_read(G):
        if args.fc and G > args.fg0 and G < 31:
            a.e(f"ds_read_b32 v{vMODE}, v{vZ} offset:{MODEA}")
            fcs["rd"] = True

    def wave0(fn, nm):
        if args.nosync:
            return
        l = a.newlabel(nm)
        a.e(f"s_cmp_lg_u32 s{sWAVE}, 0")
        a.e(f"s_cbranch_scc1 {l}")
        fn()
        a.label(l)

    a.vmem(f"buffer_load_ushort v{vX0}, v{vXOFF}, {sr(sX,4)}, 0 offen nt", "x")
    a.vmem(f"buffer_load_ushort v{vX1}, v{vX1}, {sr(sX,4)}, 0 offen nt", "x")
    a.e(f"s_bfe_u32 s{sT}, s{sIDX}, 0x60001")
    a.e(f"s_lshl_b32 s{sT}, s{sT}, 20")
    a.e(f"s_add_u32 s{sK}, s{sP+2}, s{sT}")
    a.e(f"s_addc_u32 s{sK+1}, s{sP+3}, 0")
    a.e(f"s_mov_b32 s{sK+2}, {1024*1024}")
    a.e(f"s_mov_b32 s{sK+3}, 0x20000")
    a.e(f"s_add_u32 s{sV}, s{sP+4}, s{sT}")
    a.e(f"s_addc_u32 s{sV+1}, s{sP+5}, 0")
    a.e(f"s_mov_b32 s{sV+2}, {1024*1024}")
    a.e(f"s_mov_b32 s{sV+3}, 0x20000")
    a.e(f"s_mul_i32 s{sT}, s{sH}, {128*1280}")
    a.e(f"s_add_u32 s{sWO}, s{sP+8}, s{sT}")
    a.e(f"s_addc_u32 s{sWO+1}, s{sP+9}, 0")
    a.e(f"s_mov_b32 s{sWO+2}, {128*1280}")
    a.e(f"s_mov_b32 s{sWO+3}, 0x20000")
    a.e(f"s_mov_b32 s{sWS}, s{sOUT+4}")
    a.e(f"s_mov_b32 s{sWS+1}, s{sOUT+5}")
    a.e(f"s_mov_b32 s{sWS+2}, {8*1024*1024}")
    a.e(f"s_mov_b32 s{sWS+3}, 0x20000")
    a.e(f"s_mov_b32 s{sO}, s{sOUT}")
    a.e(f"s_mov_b32 s{sO+1}, s{sOUT+1}")
    a.e(f"s_mov_b32 s{sO+2}, 5120")
    a.e(f"s_mov_b32 s{sO+3}, 0x20000")
    NCK = len(range(args.fg0, args.fg1 + 1, args.fp))
    lz = a.newlabel("nozero")
    a.e(f"s_and_b32 s{sT}, s{sIDX}, 63")
    a.e(f"s_cmp_lg_u32 s{sT}, 0")
    a.e(f"s_cbranch_scc1 {lz}")
    a.e(f"s_cmp_lg_u32 s{sWAVE}, 0")
    a.e(f"s_cbranch_scc1 {lz}")
    for k in range(4):
        a.e(f"v_mov_b32 v{vU+k}, 0")
    a.e(f"v_lshlrev_b32 v{vU+4}, 4, v{vLANE}")
    a.e(f"s_lshl_b32 s{sT}, s{sGRP}, 12")
    for k in range(4):
        a.e(f"buffer_store_dwordx4 {vr(vU,4)}, v{vU+4}, {sr(sWS,4)}, s{sT} offen offset:{WS_ACC+1024*k} sc1")
    a.e(f"v_lshlrev_b32 v{vU+4}, 7, v{vLANE}")
    a.e(f"s_lshl_b32 s{sT}, s{sGRP}, 13")
    a.e(f"s_add_u32 s{sT}, s{sT}, {WS_LSE}")
    a.e(f"buffer_store_dword v{vU}, v{vU+4}, {sr(sWS,4)}, s{sT} offen sc1")
    if args.fc:
        a.e(f"s_cmp_lg_u32 s{sGRP}, 0")
        a.e(f"s_cbranch_scc1 {lz}")
        a.e(f"v_lshlrev_b32 v{vU+4}, 8, v{vLANE}")
        for k in range((NCK * 32 + 63) // 64):
            a.e(f"s_mov_b32 s{sT}, {WS_FL + k * 16384}")
            a.e(f"buffer_store_dword v{vU}, v{vU+4}, {sr(sWS,4)}, s{sT} offen sc1")
    a.label(lz)
    a.mark("zst")
    wo_state = {"n": 0}

    def issue_wo(n):
        for _ in range(n):
            k = wo_state["n"]
            if k >= 20:
                return
            rg, seg = divmod(k, 5)
            sos = set_soff(rg * 5120)
            immS = f" offset:{seg*256}" if seg else ""
            if not args.noo: a.vmem(f"buffer_load_dwordx4 {vr(vW+4*k,4)}, v{vWOOFF}, {sr(sWO,4)}, {sos} offen{immS}@HO", ("wo", k))
            wo_state["n"] = k + 1

    qst = {"issued": 0, "done": 0, "prep": False}

    def issue_q(n=4):
        for _ in range(n):
            t = qst["issued"]
            if args.Dh:
                a.limit(args.Dh - 1)
            sos = f"s{sQO}" if args.rot else set_soff(t * 32768)
            if not args.noq: a.vmem(f"buffer_load_dwordx4 {vr(vW+4*t,4)}, v{vWQOFF}, {sr(sWQ,4)}, {sos} offen@HQ", ("Q", t))
            if args.rot and t < 19:
                a.e(f"s_add_u32 s{sQO}, s{sQO}, 32768")
                if t % 5 == 4:
                    a.e(f"s_cmp_eq_u32 s{sQO}, {20*32768}")
                    a.e(f"s_cselect_b32 s{sQO}, 0, s{sQO}")
            qst["issued"] += 1

    def onehot(dst, src, lane):
        for j in range(4):
            a.e(f"v_and_b32_dpp v{dst+j}, v{src}, v{vMASK+j} row_newbcast:{lane} {DPPF}")

    def consume_q():
        if not qst["prep"]:
            prep()
            a.wait("x")
            a.e(f"v_lshl_or_b32 v{vX0}, v{vX0}, 16, v{vX0}")
            a.e(f"v_lshl_or_b32 v{vX1}, v{vX1}, 16, v{vX1}")
            a.e("s_nop 1")
            qst["prep"] = True
        g0 = qst["done"] * 4
        for t in range(4):
            i = g0 + t
            onehot(vOH + 4 * t, vX0 if i < 16 else vX1, i % 16)
        a.wait(("Q", g0 + 3))
        a.e("s_nop 1")
        for t in range(4):
            i = g0 + t
            cs = "0" if i == 0 else vr(vACC, 4)
            a.e(f"v_mfma_f32_16x16x32_bf16 {vr(vACC,4)}, {vr(vOH+4*t,4)}, {vr(vW+4*i,4)}, {cs}")
        qst["done"] += 1

    def run_seq(seq):
        for ch in seq:
            if ch == "Q":
                issue_q()
            elif ch == "K":
                for _ in range(4):
                    issue_one(args.Dh)
                assert st["issued"] - st["consumed"] <= NP
            elif ch == "k":
                for _ in range(2):
                    issue_one(args.Dh)
                assert st["issued"] - st["consumed"] <= NP
            elif ch == "q":
                issue_q(1)
            elif ch == "x":
                issue_one(args.Dh)
                assert st["issued"] - st["consumed"] <= NP
            elif ch == "B":
                a.e("s_barrier")
            elif ch == "M":
                consume_q()
            elif ch == "O":
                assert wo_state["n"] + 4 <= qst["done"] * 4
                issue_wo(4)
            else:
                raise ValueError(ch)

    def prep():
        a.e(f"v_and_b32 v{vT0}, 1, v{vC}")
        a.e(f"v_lshlrev_b32 v{vT0}, 4, v{vT0}")
        a.e(f"v_mov_b32 v{vT0+1}, 0xffff")
        a.e(f"v_lshlrev_b32 v{vT0+1}, v{vT0}, v{vT0+1}")
        a.e(f"v_lshrrev_b32 v{vT0+2}, 1, v{vC}")
        for j in range(4):
            a.e(f"v_cmp_eq_u32 vcc, {j}, v{vT0+2}")
            a.e("s_nop 1")
            a.e(f"v_cndmask_b32 v{vMASK+j}, 0, v{vT0+1}, vcc")
        a.e(f"s_mov_b32 s{sM1}, 0xcccccccc")
        a.e(f"s_mov_b32 s{sM1+1}, 0xcccccccc")
        a.e(f"s_mov_b32 s{sM0}, 0xaaaaaaaa")
        a.e(f"s_mov_b32 s{sM0+1}, 0xaaaaaaaa")
        a.e(f"s_mov_b32 s{sCS}, 0x{f32bits(CSCALE):08x}")
        a.e(f"v_lshlrev_b32 v{vT0}, 5, v{vC}")
        a.e(f"v_lshl_add_u32 v{vT0}, v{vR}, 4, v{vT0}")
        a.e(f"s_lshl_b32 s{sT}, s{sWAVE}, 9")
        a.e(f"v_add_u32 v{vT0+1}, s{sT}, v{vT0}")
        a.e(f"s_lshl_b32 s{sZO}, s{sGRP}, 2")
        a.e(f"s_lshl_b32 s{sFO}, s{sIDX}, 7")
        a.e(f"s_add_u32 s{sFO}, s{sFO}, {WS_LSE}")
        a.e(f"s_and_b32 s{sT}, s{sWG}, 7")
        a.e(f"s_mul_i32 s{sT}, s{sT}, 5")
        a.e(f"s_lshr_b32 s{sSHO}, s{sWG}, 3")
        a.e(f"s_add_u32 s{sSHO}, s{sSHO}, s{sT}")
        a.e(f"s_and_b32 s{sSHO}, s{sSHO}, 31")
        a.e(f"s_lshl_b32 s{sSHO}, s{sSHO}, 8")
        a.e(f"s_add_u32 s{sSHO}, s{sSHO}, {WS_FL}")
        a.e(f"s_mov_b32 s{sOK}, 0")
        a.e("s_mov_b64 vcc, -1")
        if args.fc:
            a.e(f"v_mov_b32 v{vZ}, 0")
            a.e(f"v_mov_b32 v{vMODE}, 1")
            a.e(f"ds_write_b32 v{vZ}, v{vMODE} offset:{MODEA}")

    run_seq(args.head)
    assert qst["issued"] == 20
    while qst["done"] < 5:
        consume_q()
    stamp(2)
    def zset():
        l = a.newlabel("nz")
        a.e(f"s_and_b32 s{sT}, s{sIDX}, 63")
        a.e(f"s_cmp_lg_u32 s{sT}, 0")
        a.e(f"s_cbranch_scc1 {l}")
        a.e(f"s_mov_b32 s{sZF}, 1")
        a.e(f"s_atomic_or s{sZF}, {sr(sOUT+2,2)}, s{sZO} glc")
        a.label(l)
    assert ("mark", "zst") not in a.vm
    wave0(zset, "zs")
    a.e("s_nop 7")
    a.e("s_mov_b32 exec_hi, 0")
    a.e(f"ds_write_b128 v{vT0+1}, {vr(vACC,4)} offset:{QP}")
    a.e("s_mov_b64 exec, -1")
    run_seq(args.head2)
    a.e(f"v_lshlrev_b32 v{vT0+2}, 3, v{vLANE}")
    a.e("s_waitcnt lgkmcnt(0)")
    a.e("s_barrier")
    for w in range(W):
        a.e(f"ds_read_b64 {vr(vOH+2*w,2)}, v{vT0+2} offset:{QP+w*512}")
    a.e(f"s_lshl_b32 s{sT}, s{sWAVE}, 8")
    a.e(f"v_lshlrev_b32 v{vT0+2}, 2, v{vLANE}")
    a.e(f"v_add_u32 v{vT0+2}, s{sT}, v{vT0+2}")
    a.e(f"v_lshlrev_b32 v{vT0+3}, 4, v{vC}")
    a.e(f"v_add_u32 v{vT0+3}, s{sT}, v{vT0+3}")
    a.e("s_waitcnt lgkmcnt(0)")
    for k in range(1, W):
        a.e(f"v_add_f32 v{vOH}, v{vOH}, v{vOH+2*k}")
        a.e(f"v_add_f32 v{vOH+1}, v{vOH+1}, v{vOH+2*k+1}")
    a.e(f"v_cvt_pk_bf16_f32 v{vU}, v{vOH}, v{vOH+1}")
    a.e(f"ds_write_b32 v{vT0+2}, v{vU} offset:{QF}")
    a.e("s_waitcnt lgkmcnt(0)")
    a.e(f"ds_read_b128 {vr(vQ,4)}, v{vT0+3} offset:{QF}")
    a.e("s_waitcnt lgkmcnt(0)")
    stamp(3)

    for grp in range(NG):
        i0 = grp * 4
        a.c(f"K group {grp}")
        flow(grp)
        arrive(i0 + 3)
        flow_read(grp)
        if grp == args.g_zld:
            def zld():
                a.e("s_waitcnt lgkmcnt(0)")
                a.e(f"s_load_dword s{sZF}, {sr(sOUT+2,2)}, s{sZO}")
                if args.fc:
                    a.e(f"s_load_dword s{sOK}, {sr(sOUT+2,2)}, 0")
            wave0(zld, "zl")
        for j in range(4):
            for t in range(4):
                cs = "0" if j == 0 else f"v{vT+t}"
                a.e(f"v_dot2_f32_bf16 v{vT+t}, v{slot(i0+t)+j}, v{vQ+j}, {cs}")
        st["consumed"] += 4
        if not args.DT:
            issue_wo(args.wog)
            top_up(DSS)
        a.e("s_nop 2")
        a.e(f"v_add_f32_dpp v{vT}, v{vT}, v{vT} row_ror:8 row_mask:0xf bank_mask:0x3")
        a.e(f"v_add_f32_dpp v{vT+2}, v{vT+2}, v{vT+2} row_ror:8 row_mask:0xf bank_mask:0x3")
        a.e(f"v_add_f32_dpp v{vT}, v{vT+1}, v{vT+1} row_ror:8 row_mask:0xf bank_mask:0xc")
        a.e(f"v_add_f32_dpp v{vT+2}, v{vT+3}, v{vT+3} row_ror:8 row_mask:0xf bank_mask:0xc")
        a.e("s_nop 1")
        gq = grp % 4
        a.e(f"v_add_f32_dpp v{vR2+gq}, v{vT}, v{vT} row_half_mirror row_mask:0xf bank_mask:0x5")
        a.e(f"v_add_f32_dpp v{vR2+gq}, v{vT+2}, v{vT+2} row_half_mirror row_mask:0xf bank_mask:0xa")
        if gq == 3:
            blk = grp // 4
            a.e("s_nop 1")
            for k in range(4):
                a.e(f"v_add_f32_dpp v{vR2+k}, v{vR2+k}, v{vR2+k} quad_perm:[2,3,0,1] {DPPF}")
            a.e(f"v_cndmask_b32 v{vR2}, v{vR2}, v{vR2+1}, {sr(sM1,2)}")
            a.e(f"v_cndmask_b32 v{vR2+2}, v{vR2+2}, v{vR2+3}, {sr(sM1,2)}")
            a.e("s_nop 1")
            a.e(f"v_add_f32_dpp v{vR2}, v{vR2}, v{vR2} quad_perm:[1,0,3,2] {DPPF}")
            a.e(f"v_add_f32_dpp v{vR2+2}, v{vR2+2}, v{vR2+2} quad_perm:[1,0,3,2] {DPPF}")
            a.e(f"v_cndmask_b32 v{vS+blk}, v{vR2}, v{vR2+2}, {sr(sM0,2)}")
        if args.bar and (grp + 1) % args.bar == 0 and grp != NG - 1:
            a.e("s_barrier")

    a.c("softmax")
    stamp(4)
    vM = vU
    a.e(f"v_max_f32 v{vM}, v{vS}, v{vS+1}")
    a.e(f"v_max3_f32 v{vM}, v{vM}, v{vS+2}, v{vS+3}")
    for sh in (8, 4, 2, 1):
        a.e("s_nop 1")
        a.e(f"v_max_f32_dpp v{vM}, v{vM}, v{vM} row_ror:{sh} {DPPF}")
    a.e(f"s_lshl_b32 s{sT}, s{sWAVE}, 4")
    a.e(f"v_lshl_add_u32 v{vT0+2}, v{vR}, 2, s{sT}")
    a.e("s_mov_b32 exec_lo, 0x00010001")
    a.e("s_mov_b32 exec_hi, 0x00010001")
    a.e(f"ds_write_b32 v{vT0+2}, v{vM} offset:{MX}")
    a.e("s_mov_b64 exec, -1")
    a.e(f"v_lshlrev_b32 v{vT0+3}, 3, v{vC}")
    a.e("s_waitcnt lgkmcnt(0)")
    a.e("s_barrier")
    a.e(f"ds_read_b64 {vr(vU+2,2)}, v{vT0+3} offset:{MX}")
    a.e("s_waitcnt lgkmcnt(0)")
    a.e(f"v_max_f32 v{vM}, v{vU+2}, v{vU+3}")
    for sh in (8, 4, 2, 1):
        a.e("s_nop 1")
        a.e(f"v_max_f32_dpp v{vM}, v{vM}, v{vM} row_ror:{sh} {DPPF}")
    vL = vU + 2
    a.e(f"v_mul_f32 v{vMC}, s{sCS}, v{vM}")
    for k in range(NB):
        a.e(f"v_fma_f32 v{vS+k}, v{vS+k}, s{sCS}, -v{vMC}")
    for k in range(NB):
        a.e(f"v_exp_f32 v{vS+k}, v{vS+k}")
    a.e("s_nop 0")
    for k in range(NB):
        a.e(f"v_cvt_pk_bf16_f32 v{vS+k}, v{vS+k}, v{vS+k}")
    for k in range(NB):
        a.e(f"v_and_b32 v{vT+k}, 0xffff0000, v{vS+k}")
    a.e(f"v_add_f32 v{vL}, v{vT}, v{vT+1}")
    a.e(f"v_add_f32 v{vT+2}, v{vT+2}, v{vT+3}")
    a.e(f"v_add_f32 v{vL}, v{vL}, v{vT+2}")
    for sh in (8, 4, 2, 1):
        a.e("s_nop 1")
        a.e(f"v_add_f32_dpp v{vL}, v{vL}, v{vL} row_ror:{sh} {DPPF}")
    a.e("s_mov_b32 exec_lo, 0x00010001")
    a.e("s_mov_b32 exec_hi, 0x00010001")
    a.e(f"ds_write_b32 v{vT0+2}, v{vL} offset:{MX+128}")
    a.e("s_mov_b64 exec, -1")
    a.e("s_waitcnt lgkmcnt(0)")
    a.e("s_barrier")

    def wave0(fn, nm):
        if args.nosync:
            return
        l = a.newlabel(nm)
        a.e(f"s_cmp_lg_u32 s{sWAVE}, 0")
        a.e(f"s_cbranch_scc1 {l}")
        fn()
        a.label(l)

    sDB = sr(sOUT + 2, 2)
    sWB = sr(sOUT + 4, 2)

    def spin_nonzero(reg, base, off, nm):
        lok = a.newlabel(nm + "ok")
        lsp = a.newlabel(nm + "sp")
        a.e(f"s_cmp_lg_u32 s{reg}, 0")
        a.e(f"s_cbranch_scc1 {lok}")
        a.e(f"s_mov_b32 s{sT+3}, 0")
        a.label(lsp)
        a.e(f"s_atomic_or s{reg}, {base}, s{off} glc")
        a.e(f"s_add_u32 s{sT+3}, s{sT+3}, 1")
        a.e(f"s_lshr_b32 s{sT+1}, s{sT+3}, 18")
        a.e("s_waitcnt lgkmcnt(0)")
        a.e(f"s_or_b32 s{sT+1}, s{sT+1}, s{reg}")
        a.e(f"s_cmp_eq_u32 s{sT+1}, 0")
        a.e(f"s_cbranch_scc1 {lsp}")
        a.label(lok)

    def publish_lse():
        a.e(f"ds_read_b64 {vr(vU+2,2)}, v{vT0+3} offset:{MX+128}")
        a.e("s_waitcnt lgkmcnt(0)")
        a.e(f"v_add_f32 v{vL}, v{vU+2}, v{vU+3}")
        for sh in (8, 4, 2, 1):
            a.e("s_nop 1")
            a.e(f"v_add_f32_dpp v{vL}, v{vL}, v{vL} row_ror:{sh} {DPPF}")
        a.e(f"v_log_f32 v{vL}, v{vL}")
        a.e("s_nop 0")
        a.e(f"v_add_f32 v{vL}, v{vL}, v{vMC}")
        a.e("s_nop 0")
        a.e(f"v_readfirstlane_b32 s{sLSE}, v{vL}")
        spin_nonzero(sZF, sDB, sZO, "z")
        a.e(f"s_not_b32 s{sPAY}, s{sLSE}")
        a.e(f"s_max_u32 s{sPAY}, s{sPAY}, 1")
        a.e(f"s_atomic_swap s{sPAY}, {sWB}, s{sFO} glc")
    wave0(publish_lse, "pub")

    def load_payload():
        a.e("s_waitcnt lgkmcnt(0)")
        a.e(f"s_xor_b32 s{sFO}, s{sFO}, 128")
        a.e(f"s_load_dword s{sPAY}, {sWB}, s{sFO} glc")

    def finish_factor():
        a.e("s_waitcnt lgkmcnt(0)")
        spin_nonzero(sPAY, sWB, sFO, "p")
        a.e(f"s_not_b32 s{sPAY}, s{sPAY}")
        a.e(f"v_mov_b32 v{vU+2}, s{sPAY}")
        a.e(f"v_max_f32 v{vU}, s{sLSE}, v{vU+2}")
        a.e(f"v_sub_f32 v{vU+1}, s{sLSE}, v{vU}")
        a.e(f"v_sub_f32 v{vU+2}, v{vU+2}, v{vU}")
        a.e(f"v_sub_f32 v{vU+3}, v{vMC}, v{vU}")
        a.e(f"v_exp_f32 v{vU+1}, v{vU+1}")
        a.e(f"v_exp_f32 v{vU+2}, v{vU+2}")
        a.e(f"v_exp_f32 v{vU+3}, v{vU+3}")
        a.e(f"v_add_f32 v{vU+1}, v{vU+1}, v{vU+2}")
        a.e(f"v_rcp_f32 v{vU+1}, v{vU+1}")
        a.e(f"v_mov_b32 v{vU+4}, 0")
        a.e(f"v_mul_f32 v{vU+1}, v{vU+1}, v{vU+3}")
        a.e("s_mov_b64 exec, 1")
        a.e(f"ds_write_b32 v{vU+4}, v{vU+1} offset:{QP}")
        a.e("s_mov_b64 exec, -1")

    vNA, vNB, vCNT, vAO = vQ, vQ + 1, vQ + 2, vQ + 3
    sMD = sM1
    a.e(f"s_mov_b32 s{sMD}, 0x07fe07fe")
    a.e(f"s_mov_b32 s{sMD+1}, 0x07fe07fe")
    a.e(f"s_lshl_b32 s{sT}, s{sWAVE}, 3")
    a.e(f"v_add_u32 v{vNA}, s{sT}, v{vR}")
    a.e(f"v_mul_u32_u24 v{vNA}, 10, v{vNA}")
    a.e(f"v_add3_u32 v{vNA}, v{vNA}, v{vC}, -1")
    a.e(f"v_max_i32 v{vNA}, 0, v{vNA}")
    a.e(f"v_lshlrev_b32 v{vNA}, 2, v{vNA}")
    a.e(f"v_add_u32 v{vNB}, 160, v{vNA}")
    a.e(f"v_min_u32 v{vCNT}, 1, v{vC}")
    a.e(f"v_cvt_f32_u32 v{vCNT}, v{vCNT}")
    a.e(f"v_sub_f32 v{vCNT}, 1.0, v{vCNT}")
    a.e(f"s_lshl_b32 s{sT}, s{sWAVE}, 9")
    a.e(f"v_lshl_add_u32 v{vAO}, v{vLANE}, 2, s{sT}")
    for grp in range(NG):
        i0 = NG * 4 + grp * 4
        blk = grp // 4
        a.c(f"V group {grp}")
        flow(NG + grp)
        for t in range(4):
            onehot(vOH + 4 * t, vS + blk, bitrev4((grp % 4) * 4 + t))
        arrive(i0 + 3)
        flow_read(NG + grp)
        a.e("s_nop 1")
        for t in range(4):
            cs = "0" if (grp == 0 and t == 0) else vr(vACC, 4)
            a.e(f"v_mfma_f32_16x16x32_bf16 {vr(vACC,4)}, {vr(vOH+4*t,4)}, {vr(slot(i0+t),4)}, {cs}")
        st["consumed"] += 4
        if not args.DT:
            top_up(DSS)
        if grp == args.g_load:
            wave0(load_payload, "ldp")
        if grp == args.g_fin:
            wave0(finish_factor, "fin")
        if args.bar and (grp + 1) % args.bar == 0 and grp != NG - 1:
            a.e("s_barrier")

    assert wo_state["n"] == 20
    a.c("epilogue")
    stamp(5)
    a.e("s_nop 7")
    a.e("s_mov_b32 exec_hi, 0")
    a.e(f"ds_write_b128 v{vT0+1}, {vr(vACC,4)} offset:{OP}")
    a.e("s_mov_b64 exec, -1")
    a.e(f"v_lshrrev_b32 v{vT0+2}, 2, v{vC}")
    a.e(f"v_and_b32 v{vT0+3}, 3, v{vC}")
    a.e(f"v_lshl_add_u32 v{vT0+3}, v{vT0+3}, 2, v{vR}")
    a.e(f"s_lshl_b32 s{sT}, s{sWAVE}, 4")
    a.e(f"v_add_u32 v{vT0+3}, s{sT}, v{vT0+3}")
    a.e(f"v_lshlrev_b32 v{vT0+3}, 2, v{vT0+3}")
    a.e(f"v_lshl_add_u32 v{vT0+3}, v{vT0+2}, 10, v{vT0+3}")
    a.e(f"v_mov_b32 v{vU+4}, 0")
    a.e("s_waitcnt lgkmcnt(0)")
    a.e("s_barrier")
    a.e(f"ds_read2st64_b32 {vr(vU,2)}, v{vT0+3} offset0:{OP//256} offset1:{OP//256+2}")
    a.e(f"ds_read_b32 v{vU+2}, v{vU+4} offset:{QP}")
    assert OP % 256 == 0
    a.e(f"s_mul_i32 s{sT}, s{sWAVE}, 2560")
    a.e(f"v_add_u32 v{vT0+2}, s{sT}, v{vT0}")
    a.e("s_waitcnt lgkmcnt(0)")
    a.e(f"v_add_f32 v{vU}, v{vU}, v{vU+1}")
    for sh in (4, 8):
        a.e("s_nop 1")
        a.e(f"v_add_f32_dpp v{vU}, v{vU}, v{vU} row_ror:{sh} {DPPF}")
    a.e(f"v_mul_f32 v{vU}, v{vU}, v{vU+2}")
    a.e(f"v_cvt_pk_bf16_f32 v{vU}, v{vU}, v{vU}")
    a.e("s_nop 1")
    for rg in range(RG):
        onehot(vOH + 4 * rg, vU, rg)
    a.wait([("wo", i) for i in range(20)])
    a.e("s_nop 1")
    for rg in range(RG):
        for seg in range(5):
            cs = "0" if rg == 0 else vr(vY + 4 * seg, 4)
            a.e(f"v_mfma_f32_16x16x32_bf16 {vr(vY+4*seg,4)}, {vr(vOH+4*rg,4)}, {vr(vW+4*(rg*5+seg),4)}, {cs}")
    stamp(6)
    a.e("s_mov_b32 exec_hi, 0")
    a.e(f"s_lshl_b32 s{sT+2}, s{sGRP}, 12")
    a.e(f"s_mul_i32 s{sT+3}, s{sB}, 2560")
    a.e(f"s_mul_i32 s{sT+1}, s{sBLK}, 1280")
    a.e(f"s_add_u32 s{sT+3}, s{sT+3}, s{sT+1}")
    for seg in range(5):
        a.e(f"ds_write_b128 v{vT0+2}, {vr(vY+4*seg,4)} offset:{YP+seg*512}")
    a.e("s_mov_b64 exec, -1")
    a.e("s_waitcnt lgkmcnt(0)")
    a.e("s_barrier")
    assert YP % 256 == 0
    for m, reg in ((0, vNA), (1, vNB)):
        for k in range(4):
            a.e(f"ds_read2st64_b32 {vr(vW+8*m+2*k,2)}, v{reg} offset0:{YP//256+k*20} offset1:{YP//256+k*20+10}")
    for m in range(2):
        a.e(f"s_waitcnt lgkmcnt({4-4*m})")
        b = vW + 8 * m
        for k in range(4):
            a.e(f"v_add_f32 v{b+2*k}, v{b+2*k}, v{b+2*k+1}")
        a.e(f"v_add_f32 v{b}, v{b}, v{b+2}")
        a.e(f"v_add_f32 v{b+4}, v{b+4}, v{b+6}")
        a.e(f"v_add_f32 v{b}, v{b}, v{b+4}")
        a.e(f"v_cndmask_b32 v{b}, v{vCNT}, v{b}, {sr(sMD,2)}")
        a.e(f"v_mov_b32 v{b+1}, v{b}")
        a.e(f"buffer_atomic_add_f32 v{b+1}, v{vAO}, {sr(sWS,4)}, s{sT+2} offen offset:{WS_ACC+256*m} sc0")
    for m, reg in ((0, vNA), (1, vNB)):
        b = vW + 8 * m
        l = a.newlabel("nst")
        if m == 0:
            a.e("s_waitcnt vmcnt(0)")
        a.e(f"v_mov_b32_dpp v{b+2}, v{b+1} row_newbcast:0 {DPPF}")
        a.e(f"v_add_f32 v{b}, v{b}, v{b+1}")
        a.e(f"v_cmp_eq_f32 vcc, 0x427c0000, v{b+2}")
        a.e(f"v_cvt_pk_bf16_f32 v{b}, v{b}, v{b}")
        a.e(f"v_lshrrev_b32 v{b+3}, 1, v{reg}")
        a.e(f"s_and_b64 exec, vcc, {sr(sMD,2)}")
        a.e(f"s_cbranch_execz {l}")
        a.e(f"buffer_store_short v{b}, v{b+3}, {sr(sO,4)}, s{sT+3} offen")
        a.label(l)
        a.e("s_mov_b64 exec, -1")
    a.label("L_end")
    if inst:
        a.e("s_mov_b64 exec, -1")
        stamp(7)
        a.e(f"s_getreg_b32 s{sT+1}, hwreg(HW_REG_XCC_ID)")
        a.e(f"s_getreg_b32 s{sT+2}, hwreg(HW_REG_HW_ID)")
        a.e("s_waitcnt lgkmcnt(0)")
        a.e(f"v_mov_b32 v{vU}, 0")
        for k in range(8):
            a.e(f"v_writelane_b32 v{vU}, s{sST+2*k}, {k}")
        a.e(f"v_writelane_b32 v{vU}, s{sT+1}, 14")
        a.e(f"v_writelane_b32 v{vU}, s{sT+2}, 15")
        a.e(f"s_mul_i32 s{sT}, s{sWG}, {W}")
        a.e(f"s_add_u32 s{sT}, s{sT}, s{sWAVE}")
        a.e(f"s_lshl_b32 s{sT}, s{sT}, 6")
        a.e(f"s_add_u32 s{sT}, s{sT}, {WS_ST}")
        a.e(f"v_lshlrev_b32 v{vU+1}, 2, v{vLANE}")
        a.e("s_mov_b64 exec, 0xffff")
        a.e(f"buffer_store_dword v{vU}, v{vU+1}, {sr(sWS,4)}, s{sT} offen")
        if args.dbgt:
            a.e(f"s_cmp_lg_u32 s{sWAVE}, 0")
            a.e("s_cbranch_scc1 L_exit")
            a.e(f"s_not_b32 s{sT+1}, s{sST}")
            a.e(f"s_not_b32 s{sT+2}, s{sST+14}")
            a.e(f"v_mov_b32 v{vU+2}, 0")
            a.e(f"v_mov_b32 v{vU+3}, 0")
            items = [(1, sT+1), (2, sST+6), (3, sST+8), (12, sST+10), (13, sST+14), (14, sT+2), (15, sST+2)]
            for k, (dw, sreg) in enumerate(items):
                a.e(f"v_writelane_b32 v{vU+2}, s{sreg}, {k}")
                a.e(f"s_mov_b32 s{sT+3}, {dw*4}")
                a.e(f"v_writelane_b32 v{vU+3}, s{sT+3}, {k}")
            a.e("s_mov_b64 exec, 0x7f")
            a.e(f"buffer_atomic_umax v{vU+2}, v{vU+3}, {sr(sDBG,4)}, 0 offen")
    a.label("L_exit")
    a.e("s_endpgm")

    acc = (VGPRS + 3) // 4 * 4
    a.raw('.section .rodata,"a"')
    a.raw(".p2align 6")
    a.raw(f""".amdhsa_kernel {KNAME}
  .amdhsa_next_free_vgpr {VGPRS}
  .amdhsa_next_free_sgpr {SGPRS}
  .amdhsa_accum_offset {acc}
  .amdhsa_group_segment_fixed_size 0
  .amdhsa_kernarg_size 104
  .amdhsa_user_sgpr_count 2
  .amdhsa_user_sgpr_kernarg_segment_ptr 1
  .amdhsa_system_sgpr_workgroup_id_x 1
  .amdhsa_float_denorm_mode_32 3
.end_amdhsa_kernel
""")
    return finalize(a.text(), args)


if __name__ == "__main__":
    ap = argparse.ArgumentParser()
    ap.add_argument("-o", default=f"cdna_kernels/{NAME}.s")
    ap.add_argument("--NP", type=int, default=28)
    ap.add_argument("--D", type=int, default=6)
    ap.add_argument("--lr", type=int, default=2)
    ap.add_argument("--pat", default="0123568974+44")
    ap.add_argument("--bar", type=int, default=4)
    ap.add_argument("--hbar", type=int, default=1)
    ap.add_argument("--wo0", type=int, default=0)
    ap.add_argument("--wo1", type=int, default=0)
    ap.add_argument("--wog", type=int, default=2)
    ap.add_argument("--head", default="QKQKQKQKQK")
    ap.add_argument("--head2", default="KK")
    ap.add_argument("--K0", type=int, default=8)
    ap.add_argument("--K1", type=int, default=16)
    ap.add_argument("--g_set", type=int, default=1)
    ap.add_argument("--g_load", type=int, default=12)
    ap.add_argument("--g_check", type=int, default=12)
    ap.add_argument("--inst", type=int, default=0)
    ap.add_argument("--DT", type=int, default=5)
    ap.add_argument("--fc", type=int, default=1)
    ap.add_argument("--scr", type=int, default=0)
    ap.add_argument("--pol", default="nnnnnnnn")
    ap.add_argument("--kh", default="nt")
    ap.add_argument("--wh", default="nt")
    ap.add_argument("--map", type=int, default=4)
    ap.add_argument("--xm", default="0")
    ap.add_argument("--DS", type=int, default=3)
    ap.add_argument("--theta", type=int, default=5)
    ap.add_argument("--fg0", type=int, default=9)
    ap.add_argument("--fg1", type=int, default=28)
    ap.add_argument("--fp", type=int, default=3)
    ap.add_argument("--g_fin", type=int, default=14)
    ap.add_argument("--g_zset", type=int, default=3)
    ap.add_argument("--g_zld", type=int, default=7)
    ap.add_argument("--boost", type=int, default=0)
    ap.add_argument("--b0", type=int, default=36)
    ap.add_argument("--b1", type=int, default=56)
    ap.add_argument("--rot", type=int, default=0)
    ap.add_argument("--cu", type=int, default=1)
    ap.add_argument("--Dh", type=int, default=0)
    ap.add_argument("--wot", type=int, default=2)
    ap.add_argument("--noq", type=int, default=0)
    ap.add_argument("--noo", type=int, default=0)
    ap.add_argument("--nosync", type=int, default=0)
    ap.add_argument("--dbgt", type=int, default=0)
    args = ap.parse_args()
    open(args.o, "w").write(gen(args))
```

```python
import sys, math, struct, argparse

NAME = "concat_heads__gqa_block_cached__gqa_block_cached__decode"
KNAME = NAME + "_kernel"


def f32bits(x):
    return struct.unpack("<I", struct.pack("<f", x))[0]


def bitrev4(t):
    return ((t & 1) << 3) | ((t & 2) << 1) | ((t & 4) >> 1) | ((t & 8) >> 3)


class Asm:
    def __init__(self):
        self.lines = []
        self.vm = []
        self.nlabel = 0

    def e(self, s):
        self.lines.append("    " + s)

    def c(self, s):
        self.lines.append("    ; " + s)

    def label(self, s):
        self.lines.append(s + ":")

    def newlabel(self, base):
        self.nlabel += 1
        return f"L_{base}_{self.nlabel}"

    def raw(self, s):
        self.lines.append(s)

    def vmem(self, s, tag):
        self.e(s)
        self.vm.append(tag)
        assert len(self.vm) <= 58, "too many outstanding vmem ops"

    def mark(self, tag):
        self.vm.append(("mark", tag))

    def count_after(self, tag):
        idx = max(i for i, t in enumerate(self.vm) if t == tag)
        return sum(1 for t in self.vm[idx + 1:] if not (isinstance(t, tuple) and t[0] == "mark"))

    def wait(self, tags):
        if not isinstance(tags, (list, set)):
            tags = [tags]
        last = -1
        for i, t in enumerate(self.vm):
            if t in tags:
                last = i
        if last < 0:
            return
        n = sum(1 for t in self.vm[last + 1:] if not (isinstance(t, tuple) and t[0] == "mark"))
        self.e(f"s_waitcnt vmcnt({n})")
        self.vm = self.vm[last + 1:]

    def limit(self, n):
        real = [i for i, t in enumerate(self.vm) if not (isinstance(t, tuple) and t[0] == "mark")]
        if len(real) <= n:
            return
        last = real[len(real) - n - 1]
        self.e(f"s_waitcnt vmcnt({n})")
        self.vm = self.vm[last + 1:]

    def text(self):
        return "\n".join(self.lines) + "\n"


def vr(a, n=1):
    return f"v{a}" if n == 1 else f"v[{a}:{a+n-1}]"


def sr(a, n=1):
    return f"s{a}" if n == 1 else f"s[{a}:{a+n-1}]"


def finalize(text, args):
    import re
    pol = args.pol
    assert len(pol) == 8

    def sub(body, p4):
        for ch, c in zip("KVQO", p4):
            body = body.replace("@H" + ch, " nt" if c == "n" else "")
        return body
    if pol[:4] == pol[4:]:
        return sub(text, pol[:4])
    k0 = text.index("    s_cbranch_scc1 L_exit\n") + len("    s_cbranch_scc1 L_exit\n")
    k1 = text.index("L_exit:\n")
    head, body, tail = text[:k0], text[k0:k1], text[k1:]
    bit = {0: 2, 1: 5, 2: 7}[args.map]
    ren = lambda b, sfx: re.sub(r"\bL_(?!exit)(\w+)", lambda m: "L_" + m.group(1) + sfx, b)
    out = head + f"    s_bitcmp1_b32 s2, {bit}\n    s_cbranch_scc1 L_bodyB\n"
    out += ren(sub(body, pol[:4]), "_a") + "    s_endpgm\nL_bodyB:\n" + ren(sub(body, pol[4:]), "_b") + tail
    return out


def gen(args):
    a = Asm()
    W = 8
    NP = args.NP
    DSS = args.D
    inst = args.inst
    hint = (" " + args.wh) if args.wh else ""
    khint = (" " + args.kh) if args.kh else ""
    NG = 16
    NB = 4
    NWQ = 20
    RG = 4
    CSCALE = (128 ** -0.5) * math.log2(math.e)
    LR = args.lr

    QP = 0
    QF = QP + W * 512
    MX = QF + W * 256
    LS = MX + 64
    FF = LS + 64
    OP = MX + 256
    YP = OP + W * 512
    MODEA = YP + W * 2560
    LDS_BYTES = MODEA + 64

    WS_ACC = 0
    WS_LSE = 65536
    WS_FL = 131072
    WS_ST = 4 * 1024 * 1024
    DBG_FLAG = 16
    DBG_ZERO = 80

    vTID, vLANE, vC, vR, vKOFF, vWQOFF, vWOOFF, vXOFF, vX0, vX1 = range(10)
    vT0 = 10
    vKOFF2 = 15
    vZ = 14
    vMODE = 55
    vQ = 16
    vMASK = 20
    vACC = 24
    vS = 28
    vOH = 32
    vT = vOH
    vR2 = vOH + 4
    vU = 48
    vBUF = 56
    vW = vBUF + NP * 4
    vY = vBUF
    VGPRS = vW + NWQ * 4
    assert VGPRS <= 256, VGPRS
    vLSE = vX0
    vFLG = vX1
    vPAY = vXOFF
    vMC = vWQOFF

    sWG = 2
    sKA = 4
    sP = 8
    sOUT = 20
    sBLK, sH, sB, sSPLIT, sWAVE, sIDX = 26, 27, 28, 29, 30, 31
    sK, sV, sWQ, sWO, sX, sWS = 32, 36, 40, 44, 48, 52
    sOFF = 56
    sT = 57
    sM1, sM0 = 64, 66
    sCS = 68
    sGRP = 69
    sOK = 70
    sQO = 71
    sDBG = 72
    sO = 76
    sLSE, sPAY, sFLG, sZF, sREP, sFO, sZO, sSHO = 6, 7, 18, 19, 3, 62, 63, 61
    sXO, sKO = 72, 73
    sST = 80
    SGPRS = 80 if not inst else 100

    def stamp(k):
        if inst:
            a.e(f"s_memrealtime s[{sST+2*k}:{sST+2*k+1}]")

    DPPF = "row_mask:0xf bank_mask:0xf"

    a.raw("; generated by gen/gen5.py (fused decode attention: q-proj + flash-decoding + out-proj)")
    a.raw(f"; @launch grid=(256,1,1) block=({W*64},1,1) lds={LDS_BYTES}")
    a.raw('.amdgcn_target "amdgcn-amd-amdhsa--gfx950"')
    a.raw(".text")
    a.raw(f".globl {KNAME}")
    a.raw(".p2align 8")
    a.raw(f".type {KNAME},@function")
    a.label(KNAME)
    a.e(f"s_cmp_ge_u32 s{sWG}, 256")
    a.e("s_cbranch_scc1 L_exit")
    stamp(0)
    if args.scr:
        a.e(f"s_and_b32 s{sT}, s{sWG}, 3")
        a.e(f"s_lshl_b32 s{sT}, s{sT}, 3")
        a.e(f"s_bfe_u32 s{sT+1}, s{sWG}, 0x30002")
        a.e(f"s_or_b32 s{sT}, s{sT}, s{sT+1}")
        a.e(f"s_andn2_b32 s{sWG}, s{sWG}, 31")
        a.e(f"s_or_b32 s{sWG}, s{sWG}, s{sT}")
    a.e(f"s_and_b32 s{sT}, s{sWG}, 7")
    if args.map == 0:
        a.e(f"s_lshr_b32 s{sBLK}, s{sT}, 2")
    elif args.map in (1, 3):
        a.e(f"s_bfe_u32 s{sBLK}, s{sWG}, 0x10005")
        if args.map == 3:
            a.e(f"s_xor_b32 s{sT}, s{sT}, s{sBLK}")
    elif args.map == 4:
        a.e(f"s_and_b32 s{sBLK}, s{sWG}, 1")
        a.e(f"s_lshr_b32 s{sT}, s{sT}, 1")
    elif args.map == 5:
        a.e(f"s_bfe_u32 s{sBLK}, s{sWG}, 0x10001")
        a.e(f"s_lshr_b32 s{sT+1}, s{sT}, 2")
        a.e(f"s_lshl_b32 s{sT+1}, s{sT+1}, 1")
        a.e(f"s_and_b32 s{sT}, s{sT}, 1")
        a.e(f"s_or_b32 s{sT}, s{sT}, s{sT+1}")
    else:
        a.e(f"s_lshr_b32 s{sBLK}, s{sWG}, 7")
    a.e(f"s_mul_i32 s{sT+3}, s{sBLK}, 40")
    a.e(f"s_add_u32 s{sKA}, s0, s{sT+3}")
    a.e(f"s_addc_u32 s{sKA+1}, s1, 0")
    a.e(f"s_load_dwordx8 {sr(sP,8)}, {sr(sKA,2)}, 0")
    a.e(f"s_load_dwordx2 {sr(sP+8,2)}, {sr(sKA,2)}, 32")
    a.e(f"s_load_dwordx4 {sr(sOUT,4)}, s[0:1], 80")
    a.e(f"s_load_dwordx2 {sr(sOUT+4,2)}, s[0:1], 96")
    a.e(f"s_lshr_b32 s{sT+1}, s{sWG}, 3")
    if args.map in (0, 4, 5):
        a.e(f"s_lshl_b32 s{sT}, s{sT}, 3")
        a.e(f"s_lshr_b32 s{sT+2}, s{sT+1}, 2")
        a.e(f"s_add_u32 s{sT}, s{sT}, s{sT+2}")
        a.e(f"s_and_b32 s{sH}, s{sT}, 31")
    elif args.map in (1, 3):
        a.e(f"s_lshl_b32 s{sT}, s{sT}, 2")
        a.e(f"s_lshr_b32 s{sT+2}, s{sT+1}, 3")
        a.e(f"s_add_u32 s{sH}, s{sT}, s{sT+2}")
    else:
        a.e(f"s_lshl_b32 s{sT}, s{sT}, 2")
        a.e(f"s_bfe_u32 s{sT+2}, s{sT+1}, 0x20002")
        a.e(f"s_add_u32 s{sH}, s{sT}, s{sT+2}")
    a.e(f"s_lshr_b32 s{sB}, s{sT+1}, 1")
    a.e(f"s_and_b32 s{sB}, s{sB}, 1")
    a.e(f"s_and_b32 s{sSPLIT}, s{sT+1}, 1")
    a.e(f"v_and_b32 v{vLANE}, 63, v{vTID}")
    a.e(f"v_lshrrev_b32 v{vT0}, 6, v{vTID}")
    a.e(f"v_and_b32 v{vC}, 15, v{vTID}")
    a.e(f"v_readfirstlane_b32 s{sWAVE}, v{vT0}")
    a.e(f"v_lshrrev_b32 v{vR}, 4, v{vLANE}")
    a.e(f"s_lshl_b32 s{sGRP}, s{sBLK}, 1")
    a.e(f"s_add_u32 s{sGRP}, s{sGRP}, s{sB}")
    a.e(f"s_lshl_b32 s{sIDX}, s{sGRP}, 5")
    a.e(f"s_add_u32 s{sIDX}, s{sIDX}, s{sH}")
    a.e(f"s_lshl_b32 s{sIDX}, s{sIDX}, 1")
    a.e(f"s_add_u32 s{sIDX}, s{sIDX}, s{sSPLIT}")
    PT = [int(ch) for ch in args.pat[:10]]
    assert sorted(PT) == list(range(10))
    COL = [0] * 10
    for k, src in enumerate([0, 1, 6, 7, 8, 2, 3, 4, 5, 9]):
        COL[src] = 1 << PT[k]
    r = args.pat[10:]
    while r:
        assert r[0] == "+"
        COL[int(r[1])] ^= 1 << int(r[2])
        r = r[3:]
    WSMASK = COL[6] | COL[7] | COL[8] | COL[9]
    a.e(f"v_lshlrev_b32 v{vKOFF}, 4, v{vLANE}")
    a.e(f"s_mul_i32 s{sT}, s{sSPLIT}, {COL[9] << 10}")
    for k in range(3):
        a.e(f"s_bfe_u32 s{sT+1}, s{sWAVE}, 0x{(1<<16)|k:x}")
        a.e(f"s_mul_i32 s{sT+1}, s{sT+1}, {COL[6+k] << 10}")
        a.e(f"s_xor_b32 s{sT}, s{sT}, s{sT+1}")
    XM = int(args.xm, 16)
    if XM:
        a.e(f"s_mov_b32 s{sXO}, 0")
        srcs = [(sSPLIT, 0), (sB, 0)] + [(sH, k) for k in range(5)] + [(sBLK, 0)]
        for k, (reg, bit) in enumerate(srcs):
            nib = (XM >> (4 * k)) & 15
            if not nib:
                continue
            cst = 0
            for j in range(4):
                if (nib >> j) & 1:
                    cst ^= COL[2 + j]
            assert cst & 3 == 0
            a.e(f"s_bitcmp1_b32 s{reg}, {bit}")
            a.e(f"s_cselect_b32 s{sT+1}, {cst << 10}, 0")
            a.e(f"s_xor_b32 s{sXO}, s{sXO}, s{sT+1}")
        a.e(f"s_and_b32 s{sT+1}, s{sXO}, {WSMASK << 10}")
        a.e(f"s_xor_b32 s{sT}, s{sT}, s{sT+1}")
        a.e(f"s_andn2_b32 s{sXO}, s{sXO}, {WSMASK << 10}")
    a.e(f"v_add_u32 v{vKOFF}, s{sT}, v{vKOFF}")

    def tile_T(t):
        T = 0
        for k in range(6):
            if (t >> k) & 1:
                T ^= COL[k]
        return T
    OVL = sorted(set(tile_T(t) & WSMASK for t in range(64)))
    assert len(OVL) <= 2
    KOFFREG = {0: vKOFF}
    if len(OVL) == 2:
        KOFFREG[OVL[1]] = vKOFF2
        a.e(f"v_xor_b32 v{vKOFF2}, {OVL[1] << 10}, v{vKOFF}")
    a.e(f"s_mul_i32 s{sT}, s{sWAVE}, {NWQ*4}")
    a.e(f"v_add_u32 v{vWQOFF}, s{sT}, v{vR}")
    a.e(f"v_lshlrev_b32 v{vWQOFF}, 13, v{vWQOFF}")
    a.e(f"v_lshl_add_u32 v{vWQOFF}, v{vC}, 4, v{vWQOFF}")
    a.e(f"s_mov_b32 s{sK+2}, {1 << 20}")
    a.e(f"s_mov_b32 s{sK+3}, 0x20000")
    a.e(f"s_lshl_b32 s{sT}, s{sH}, 8")
    a.e(f"s_sub_u32 s{sWQ+2}, {640*8192}, s{sT}")
    a.e(f"s_mov_b32 s{sWQ+3}, 0x20000")
    a.e(f"s_bfe_u32 s{sT+1}, s{sIDX}, 0x60001")
    a.e(f"s_lshl_b32 s{sT+1}, s{sT+1}, 20")
    a.e("s_waitcnt lgkmcnt(0)")
    stamp(1)
    a.e(f"s_add_u32 s{sWQ}, s{sP+6}, s{sT}")
    a.e(f"s_addc_u32 s{sWQ+1}, s{sP+7}, 0")
    a.e(f"s_add_u32 s{sK}, s{sP+2}, s{sT+1}")
    a.e(f"s_addc_u32 s{sK+1}, s{sP+3}, 0")

    stream = [("K", t) for t in range(NG * 4)] + [("V", t) for t in range(NG * 4)]
    st = {"issued": 0, "consumed": 0, "soff": None}

    def set_soff(v):
        if v == 0:
            return "0"
        if st["soff"] != v:
            a.e(f"s_mov_b32 s{sOFF}, {v}")
            st["soff"] = v
        return f"s{sOFF}"

    def slot(i):
        return vBUF + (i % NP) * 4

    def issue_one(lim=0):
        if lim:
            a.limit(lim - 1)
        i = st["issued"]
        kind, t = stream[i]
        buf = slot(i)
        if True:
            srd = sK if kind == "K" else sV
            T = tile_T(t)
            koff = KOFFREG[T & WSMASK]
            off = (T & ~WSMASK) << 10
            imm = off % 4096
            if XM:
                if st.get("koff") != off - imm:
                    a.e(f"s_xor_b32 s{sKO}, s{sXO}, {off - imm}")
                    st["koff"] = off - imm
                sos = f"s{sKO}"
            else:
                sos = set_soff(off - imm)
            immS = f" offset:{imm}" if imm else ""
            a.vmem(f"buffer_load_dwordx4 {vr(buf,4)}, v{koff}, {sr(srd,4)}, {sos} offen{immS}@H{kind}", ("S", i))
        st["issued"] = i + 1

    def top_up(limit):
        limit = min(limit, NP)
        while st["issued"] < len(stream) and st["issued"] - st["consumed"] < limit:
            issue_one()

    def arrive(i_last):
        if not args.DT:
            a.wait(("S", i_last))
            return
        def one():
            if wo_state["n"] < 20 and args.wot and st["issued"] % args.wot == 0 and qst["done"] == 5:
                issue_wo(1)
            issue_one()
        if st["issued"] - (i_last + 1) >= args.DT:
            n = args.cu if st.get("primed") else args.DT
            for _ in range(n):
                if st["issued"] < len(stream) and st["issued"] - st["consumed"] < NP:
                    a.limit(args.DT - 1)
                    one()
                    st["primed"] = True
            a.wait(("S", i_last))
            return
        for i in range(i_last - 3, i_last + 1):
            a.wait(("S", i))
            while st["issued"] < len(stream) and st["issued"] - (i + 1) < args.DT and st["issued"] - st["consumed"] < NP:
                if args.fc and fcs["on"] and True:
                    l = a.newlabel("sh")
                    a.e(f"s_cbranch_vccnz {l}")
                    a.e(f"s_waitcnt vmcnt({args.DS - 1})")
                    a.label(l)
                one()

    fcs = {"on": False, "k": 0, "pend": None, "rd": False}

    def flow(G):
        if not args.fc:
            return
        if fcs["rd"]:
            a.e("s_waitcnt lgkmcnt(0)")
            a.e(f"v_readfirstlane_b32 s{sT}, v{vMODE}")
            a.e("s_nop 3")
            a.e(f"s_cmp_lg_u32 s{sT}, 0")
            a.e("s_cselect_b64 vcc, -1, 0")
            fcs["on"] = True
            fcs["rd"] = False
        if fcs["pend"] is not None:
            k = fcs["pend"]
            def wr():
                a.e("s_waitcnt lgkmcnt(0)")
                a.e(f"s_cmp_ge_u32 s{sREP}, {args.theta}")
                a.e(f"s_cselect_b32 s{sT}, 1, 0")
                a.e(f"v_mov_b32 v{vMODE}, s{sT}")
                a.e(f"ds_write_b32 v{vZ}, v{vMODE} offset:{MODEA}")
            wave0(wr, "fw")
            fcs["pend"] = None
        if G >= args.fg0 and G <= args.fg1 and (G - args.fg0) % args.fp == 0:
            def rep():
                l = a.newlabel("nf")
                a.e("s_waitcnt lgkmcnt(0)")
                a.e(f"s_mov_b32 s{sREP}, 8")
                a.e(f"s_cmp_eq_u32 s{sOK}, 0")
                a.e(f"s_cbranch_scc1 {l}")
                a.e(f"s_mov_b32 s{sREP}, 1")
                a.e(f"s_atomic_add s{sREP}, {sr(sOUT+4,2)}, s{sSHO} glc")
                a.label(l)
                a.e(f"s_add_u32 s{sSHO}, s{sSHO}, 8192")
            wave0(rep, "fr")
            fcs["pend"] = fcs["k"]
            fcs["k"] += 1

    def flow_read(G):
        if args.fc and G > args.fg0 and G < 31:
            a.e(f"ds_read_b32 v{vMODE}, v{vZ} offset:{MODEA}")
            fcs["rd"] = True

    def wave0(fn, nm):
        if args.nosync:
            return
        l = a.newlabel(nm)
        a.e(f"s_cmp_lg_u32 s{sWAVE}, 0")
        a.e(f"s_cbranch_scc1 {l}")
        fn()
        a.label(l)

    NCK = len(range(args.fg0, args.fg1 + 1, args.fp))

    def setup_rest():
        for srd, n in ((sX, 1280), (sV, 1 << 20), (sWO, 128 * 1280), (sWS, 8 << 20), (sO, 5120)):
            a.e(f"s_mov_b32 s{srd+2}, {n}")
            a.e(f"s_mov_b32 s{srd+3}, 0x20000")
        a.e(f"s_mul_i32 s{sT+2}, s{sB}, 1280")
        a.e(f"s_mul_i32 s{sT+3}, s{sH}, {128*1280}")
        a.e(f"s_mul_i32 s{sT}, s{sWAVE}, {NWQ*4}")
        a.e(f"v_lshl_add_u32 v{vXOFF}, v{vC}, 2, v{vR}")
        a.e(f"v_add_u32 v{vXOFF}, s{sT}, v{vXOFF}")
        a.e(f"v_lshlrev_b32 v{vXOFF}, 1, v{vXOFF}")
        a.e(f"v_add_u32 v{vX1}, 128, v{vXOFF}")
        a.e(f"s_mul_i32 s{sT}, s{sWAVE}, {RG*4}")
        a.e(f"v_add_u32 v{vWOOFF}, s{sT}, v{vR}")
        a.e(f"v_mul_u32_u24 v{vWOOFF}, 1280, v{vWOOFF}")
        a.e(f"v_lshl_add_u32 v{vWOOFF}, v{vC}, 4, v{vWOOFF}")
        a.e(f"s_add_u32 s{sX}, s{sP}, s{sT+2}")
        a.e(f"s_addc_u32 s{sX+1}, s{sP+1}, 0")
        a.vmem(f"buffer_load_ushort v{vX0}, v{vXOFF}, {sr(sX,4)}, 0 offen nt", "x")
        a.vmem(f"buffer_load_ushort v{vX1}, v{vX1}, {sr(sX,4)}, 0 offen nt", "x")
        a.e(f"s_add_u32 s{sV}, s{sP+4}, s{sT+1}")
        a.e(f"s_addc_u32 s{sV+1}, s{sP+5}, 0")
        a.e(f"s_add_u32 s{sWO}, s{sP+8}, s{sT+3}")
        a.e(f"s_addc_u32 s{sWO+1}, s{sP+9}, 0")
        a.e(f"s_mov_b32 s{sWS}, s{sOUT+4}")
        a.e(f"s_mov_b32 s{sWS+1}, s{sOUT+5}")
        a.e(f"s_mov_b32 s{sO}, s{sOUT}")
        a.e(f"s_mov_b32 s{sO+1}, s{sOUT+1}")
        lz = a.newlabel("nozero")
        a.e(f"s_and_b32 s{sT}, s{sIDX}, 63")
        a.e(f"s_cmp_lg_u32 s{sT}, 0")
        a.e(f"s_cbranch_scc1 {lz}")
        a.e(f"s_cmp_lg_u32 s{sWAVE}, 0")
        a.e(f"s_cbranch_scc1 {lz}")
        for k in range(4):
            a.e(f"v_mov_b32 v{vU+k}, 0")
        a.e(f"v_lshlrev_b32 v{vU+4}, 4, v{vLANE}")
        a.e(f"s_lshl_b32 s{sT}, s{sGRP}, 12")
        for k in range(4):
            a.e(f"buffer_store_dwordx4 {vr(vU,4)}, v{vU+4}, {sr(sWS,4)}, s{sT} offen offset:{WS_ACC+1024*k} sc1")
        a.e(f"v_lshlrev_b32 v{vU+4}, 7, v{vLANE}")
        a.e(f"s_lshl_b32 s{sT}, s{sGRP}, 13")
        a.e(f"s_add_u32 s{sT}, s{sT}, {WS_LSE}")
        a.e(f"buffer_store_dword v{vU}, v{vU+4}, {sr(sWS,4)}, s{sT} offen sc1")
        if args.fc:
            a.e(f"s_cmp_lg_u32 s{sGRP}, 0")
            a.e(f"s_cbranch_scc1 {lz}")
            a.e(f"v_lshlrev_b32 v{vU+4}, 8, v{vLANE}")
            for k in range((NCK * 32 + 63) // 64):
                a.e(f"s_mov_b32 s{sT}, {WS_FL + k * 16384}")
                a.e(f"buffer_store_dword v{vU}, v{vU+4}, {sr(sWS,4)}, s{sT} offen sc1")
        a.label(lz)
        a.mark("zst")

    wo_state = {"n": 0}

    def issue_wo(n):
        for _ in range(n):
            k = wo_state["n"]
            if k >= 20:
                return
            rg, seg = divmod(k, 5)
            sos = set_soff(rg * 5120)
            immS = f" offset:{seg*256}" if seg else ""
            if not args.noo: a.vmem(f"buffer_load_dwordx4 {vr(vW+4*k,4)}, v{vWOOFF}, {sr(sWO,4)}, {sos} offen{immS}@HO", ("wo", k))
            wo_state["n"] = k + 1

    qst = {"issued": 0, "done": 0, "prep": False}

    def issue_q(n=4):
        for _ in range(n):
            t = qst["issued"]
            if args.Dh:
                a.limit(args.Dh - 1)
            sos = f"s{sQO}" if args.rot else set_soff(t * 32768)
            if not args.noq: a.vmem(f"buffer_load_dwordx4 {vr(vW+4*t,4)}, v{vWQOFF}, {sr(sWQ,4)}, {sos} offen@HQ", ("Q", t))
            if args.rot and t < 19:
                a.e(f"s_add_u32 s{sQO}, s{sQO}, 32768")
                if t % 5 == 4:
                    a.e(f"s_cmp_eq_u32 s{sQO}, {20*32768}")
                    a.e(f"s_cselect_b32 s{sQO}, 0, s{sQO}")
            qst["issued"] += 1

    def onehot(dst, src, lane):
        for j in range(4):
            a.e(f"v_and_b32_dpp v{dst+j}, v{src}, v{vMASK+j} row_newbcast:{lane} {DPPF}")

    def consume_q():
        if not qst["prep"]:
            prep()
            a.wait("x")
            a.e(f"v_lshl_or_b32 v{vX0}, v{vX0}, 16, v{vX0}")
            a.e(f"v_lshl_or_b32 v{vX1}, v{vX1}, 16, v{vX1}")
            a.e("s_nop 1")
            qst["prep"] = True
        g0 = qst["done"] * 4
        for t in range(4):
            i = g0 + t
            onehot(vOH + 4 * t, vX0 if i < 16 else vX1, i % 16)
        a.wait(("Q", g0 + 3))
        a.e("s_nop 1")
        for t in range(4):
            i = g0 + t
            cs = "0" if i == 0 else vr(vACC, 4)
            a.e(f"v_mfma_f32_16x16x32_bf16 {vr(vACC,4)}, {vr(vOH+4*t,4)}, {vr(vW+4*i,4)}, {cs}")
        qst["done"] += 1

    def run_seq(seq):
        for ch in seq:
            if ch == "Q":
                issue_q()
            elif ch == "K":
                for _ in range(4):
                    issue_one(args.Dh)
                assert st["issued"] - st["consumed"] <= NP
            elif ch == "k":
                for _ in range(2):
                    issue_one(args.Dh)
                assert st["issued"] - st["consumed"] <= NP
            elif ch == "q":
                issue_q(1)
            elif ch == "x":
                issue_one(args.Dh)
                assert st["issued"] - st["consumed"] <= NP
            elif ch == "S":
                setup_rest()
            elif ch == "B":
                a.e("s_barrier")
            elif ch == "M":
                consume_q()
            elif ch == "O":
                assert wo_state["n"] + 4 <= qst["done"] * 4
                issue_wo(4)
            else:
                raise ValueError(ch)

    def prep():
        a.e(f"v_and_b32 v{vT0}, 1, v{vC}")
        a.e(f"v_lshlrev_b32 v{vT0}, 4, v{vT0}")
        a.e(f"v_mov_b32 v{vT0+1}, 0xffff")
        a.e(f"v_lshlrev_b32 v{vT0+1}, v{vT0}, v{vT0+1}")
        a.e(f"v_lshrrev_b32 v{vT0+2}, 1, v{vC}")
        for j in range(4):
            a.e(f"v_cmp_eq_u32 vcc, {j}, v{vT0+2}")
            a.e("s_nop 1")
            a.e(f"v_cndmask_b32 v{vMASK+j}, 0, v{vT0+1}, vcc")
        a.e(f"s_mov_b32 s{sM1}, 0xcccccccc")
        a.e(f"s_mov_b32 s{sM1+1}, 0xcccccccc")
        a.e(f"s_mov_b32 s{sM0}, 0xaaaaaaaa")
        a.e(f"s_mov_b32 s{sM0+1}, 0xaaaaaaaa")
        a.e(f"s_mov_b32 s{sCS}, 0x{f32bits(CSCALE):08x}")
        a.e(f"v_lshlrev_b32 v{vT0}, 5, v{vC}")
        a.e(f"v_lshl_add_u32 v{vT0}, v{vR}, 4, v{vT0}")
        a.e(f"s_lshl_b32 s{sT}, s{sWAVE}, 9")
        a.e(f"v_add_u32 v{vT0+1}, s{sT}, v{vT0}")
        a.e(f"s_lshl_b32 s{sZO}, s{sGRP}, 2")
        a.e(f"s_lshl_b32 s{sFO}, s{sIDX}, 7")
        a.e(f"s_add_u32 s{sFO}, s{sFO}, {WS_LSE}")
        a.e(f"s_and_b32 s{sT}, s{sWG}, 7")
        a.e(f"s_mul_i32 s{sT}, s{sT}, 5")
        a.e(f"s_lshr_b32 s{sSHO}, s{sWG}, 3")
        a.e(f"s_add_u32 s{sSHO}, s{sSHO}, s{sT}")
        a.e(f"s_and_b32 s{sSHO}, s{sSHO}, 31")
        a.e(f"s_lshl_b32 s{sSHO}, s{sSHO}, 8")
        a.e(f"s_add_u32 s{sSHO}, s{sSHO}, {WS_FL}")
        a.e(f"s_mov_b32 s{sOK}, 0")
        a.e("s_mov_b64 vcc, -1")
        if args.fc:
            a.e(f"v_mov_b32 v{vZ}, 0")
            a.e(f"v_mov_b32 v{vMODE}, 1")
            a.e(f"ds_write_b32 v{vZ}, v{vMODE} offset:{MODEA}")

    run_seq(args.head)
    assert qst["issued"] == 20
    while qst["done"] < 5:
        consume_q()
    stamp(2)
    def zset():
        l = a.newlabel("nz")
        a.e(f"s_and_b32 s{sT}, s{sIDX}, 63")
        a.e(f"s_cmp_lg_u32 s{sT}, 0")
        a.e(f"s_cbranch_scc1 {l}")
        a.e(f"s_mov_b32 s{sZF}, 1")
        a.e(f"s_atomic_or s{sZF}, {sr(sOUT+2,2)}, s{sZO} glc")
        a.label(l)
    assert ("mark", "zst") not in a.vm
    wave0(zset, "zs")
    a.e("s_nop 7")
    a.e("s_mov_b32 exec_hi, 0")
    a.e(f"ds_write_b128 v{vT0+1}, {vr(vACC,4)} offset:{QP}")
    a.e("s_mov_b64 exec, -1")
    run_seq(args.head2)
    a.e(f"v_lshlrev_b32 v{vT0+2}, 3, v{vLANE}")
    a.e("s_waitcnt lgkmcnt(0)")
    a.e("s_barrier")
    for w in range(W):
        a.e(f"ds_read_b64 {vr(vOH+2*w,2)}, v{vT0+2} offset:{QP+w*512}")
    a.e(f"s_lshl_b32 s{sT}, s{sWAVE}, 8")
    a.e(f"v_lshlrev_b32 v{vT0+2}, 2, v{vLANE}")
    a.e(f"v_add_u32 v{vT0+2}, s{sT}, v{vT0+2}")
    a.e(f"v_lshlrev_b32 v{vT0+3}, 4, v{vC}")
    a.e(f"v_add_u32 v{vT0+3}, s{sT}, v{vT0+3}")
    a.e("s_waitcnt lgkmcnt(0)")
    for k in range(1, W):
        a.e(f"v_add_f32 v{vOH}, v{vOH}, v{vOH+2*k}")
        a.e(f"v_add_f32 v{vOH+1}, v{vOH+1}, v{vOH+2*k+1}")
    a.e(f"v_cvt_pk_bf16_f32 v{vU}, v{vOH}, v{vOH+1}")
    a.e(f"ds_write_b32 v{vT0+2}, v{vU} offset:{QF}")
    a.e("s_waitcnt lgkmcnt(0)")
    a.e(f"ds_read_b128 {vr(vQ,4)}, v{vT0+3} offset:{QF}")
    a.e("s_waitcnt lgkmcnt(0)")
    stamp(3)

    for grp in range(NG):
        i0 = grp * 4
        a.c(f"K group {grp}")
        flow(grp)
        arrive(i0 + 3)
        flow_read(grp)
        if grp == args.g_zld:
            def zld():
                a.e("s_waitcnt lgkmcnt(0)")
                a.e(f"s_load_dword s{sZF}, {sr(sOUT+2,2)}, s{sZO}")
                if args.fc:
                    a.e(f"s_load_dword s{sOK}, {sr(sOUT+2,2)}, 0")
            wave0(zld, "zl")
        for j in range(4):
            for t in range(4):
                cs = "0" if j == 0 else f"v{vT+t}"
                a.e(f"v_dot2_f32_bf16 v{vT+t}, v{slot(i0+t)+j}, v{vQ+j}, {cs}")
        st["consumed"] += 4
        if not args.DT:
            issue_wo(args.wog)
            top_up(DSS)
        a.e("s_nop 2")
        a.e(f"v_add_f32_dpp v{vT}, v{vT}, v{vT} row_ror:8 row_mask:0xf bank_mask:0x3")
        a.e(f"v_add_f32_dpp v{vT+2}, v{vT+2}, v{vT+2} row_ror:8 row_mask:0xf bank_mask:0x3")
        a.e(f"v_add_f32_dpp v{vT}, v{vT+1}, v{vT+1} row_ror:8 row_mask:0xf bank_mask:0xc")
        a.e(f"v_add_f32_dpp v{vT+2}, v{vT+3}, v{vT+3} row_ror:8 row_mask:0xf bank_mask:0xc")
        a.e("s_nop 1")
        gq = grp % 4
        a.e(f"v_add_f32_dpp v{vR2+gq}, v{vT}, v{vT} row_half_mirror row_mask:0xf bank_mask:0x5")
        a.e(f"v_add_f32_dpp v{vR2+gq}, v{vT+2}, v{vT+2} row_half_mirror row_mask:0xf bank_mask:0xa")
        if gq == 3:
            blk = grp // 4
            a.e("s_nop 1")
            for k in range(4):
                a.e(f"v_add_f32_dpp v{vR2+k}, v{vR2+k}, v{vR2+k} quad_perm:[2,3,0,1] {DPPF}")
            a.e(f"v_cndmask_b32 v{vR2}, v{vR2}, v{vR2+1}, {sr(sM1,2)}")
            a.e(f"v_cndmask_b32 v{vR2+2}, v{vR2+2}, v{vR2+3}, {sr(sM1,2)}")
            a.e("s_nop 1")
            a.e(f"v_add_f32_dpp v{vR2}, v{vR2}, v{vR2} quad_perm:[1,0,3,2] {DPPF}")
            a.e(f"v_add_f32_dpp v{vR2+2}, v{vR2+2}, v{vR2+2} quad_perm:[1,0,3,2] {DPPF}")
            a.e(f"v_cndmask_b32 v{vS+blk}, v{vR2}, v{vR2+2}, {sr(sM0,2)}")
        if args.bar and (grp + 1) % args.bar == 0 and grp != NG - 1:
            a.e("s_barrier")

    a.c("softmax")
    stamp(4)
    vM = vU
    a.e(f"v_max_f32 v{vM}, v{vS}, v{vS+1}")
    a.e(f"v_max3_f32 v{vM}, v{vM}, v{vS+2}, v{vS+3}")
    for sh in (8, 4, 2, 1):
        a.e("s_nop 1")
        a.e(f"v_max_f32_dpp v{vM}, v{vM}, v{vM} row_ror:{sh} {DPPF}")
    a.e(f"s_lshl_b32 s{sT}, s{sWAVE}, 4")
    a.e(f"v_lshl_add_u32 v{vT0+2}, v{vR}, 2, s{sT}")
    a.e("s_mov_b32 exec_lo, 0x00010001")
    a.e("s_mov_b32 exec_hi, 0x00010001")
    a.e(f"ds_write_b32 v{vT0+2}, v{vM} offset:{MX}")
    a.e("s_mov_b64 exec, -1")
    a.e(f"v_lshlrev_b32 v{vT0+3}, 3, v{vC}")
    a.e("s_waitcnt lgkmcnt(0)")
    a.e("s_barrier")
    a.e(f"ds_read_b64 {vr(vU+2,2)}, v{vT0+3} offset:{MX}")
    a.e("s_waitcnt lgkmcnt(0)")
    a.e(f"v_max_f32 v{vM}, v{vU+2}, v{vU+3}")
    for sh in (8, 4, 2, 1):
        a.e("s_nop 1")
        a.e(f"v_max_f32_dpp v{vM}, v{vM}, v{vM} row_ror:{sh} {DPPF}")
    vL = vU + 2
    a.e(f"v_mul_f32 v{vMC}, s{sCS}, v{vM}")
    for k in range(NB):
        a.e(f"v_fma_f32 v{vS+k}, v{vS+k}, s{sCS}, -v{vMC}")
    for k in range(NB):
        a.e(f"v_exp_f32 v{vS+k}, v{vS+k}")
    a.e("s_nop 0")
    for k in range(NB):
        a.e(f"v_cvt_pk_bf16_f32 v{vS+k}, v{vS+k}, v{vS+k}")
    for k in range(NB):
        a.e(f"v_and_b32 v{vT+k}, 0xffff0000, v{vS+k}")
    a.e(f"v_add_f32 v{vL}, v{vT}, v{vT+1}")
    a.e(f"v_add_f32 v{vT+2}, v{vT+2}, v{vT+3}")
    a.e(f"v_add_f32 v{vL}, v{vL}, v{vT+2}")
    for sh in (8, 4, 2, 1):
        a.e("s_nop 1")
        a.e(f"v_add_f32_dpp v{vL}, v{vL}, v{vL} row_ror:{sh} {DPPF}")
    a.e("s_mov_b32 exec_lo, 0x00010001")
    a.e("s_mov_b32 exec_hi, 0x00010001")
    a.e(f"ds_write_b32 v{vT0+2}, v{vL} offset:{MX+128}")
    a.e("s_mov_b64 exec, -1")
    a.e("s_waitcnt lgkmcnt(0)")
    a.e("s_barrier")

    def wave0(fn, nm):
        if args.nosync:
            return
        l = a.newlabel(nm)
        a.e(f"s_cmp_lg_u32 s{sWAVE}, 0")
        a.e(f"s_cbranch_scc1 {l}")
        fn()
        a.label(l)

    sDB = sr(sOUT + 2, 2)
    sWB = sr(sOUT + 4, 2)

    def spin_nonzero(reg, base, off, nm):
        lok = a.newlabel(nm + "ok")
        lsp = a.newlabel(nm + "sp")
        a.e(f"s_cmp_lg_u32 s{reg}, 0")
        a.e(f"s_cbranch_scc1 {lok}")
        a.e(f"s_mov_b32 s{sT+3}, 0")
        a.label(lsp)
        a.e(f"s_atomic_or s{reg}, {base}, s{off} glc")
        a.e(f"s_add_u32 s{sT+3}, s{sT+3}, 1")
        a.e(f"s_lshr_b32 s{sT+1}, s{sT+3}, 18")
        a.e("s_waitcnt lgkmcnt(0)")
        a.e(f"s_or_b32 s{sT+1}, s{sT+1}, s{reg}")
        a.e(f"s_cmp_eq_u32 s{sT+1}, 0")
        a.e(f"s_cbranch_scc1 {lsp}")
        a.label(lok)

    def publish_lse():
        a.e(f"ds_read_b64 {vr(vU+2,2)}, v{vT0+3} offset:{MX+128}")
        a.e("s_waitcnt lgkmcnt(0)")
        a.e(f"v_add_f32 v{vL}, v{vU+2}, v{vU+3}")
        for sh in (8, 4, 2, 1):
            a.e("s_nop 1")
            a.e(f"v_add_f32_dpp v{vL}, v{vL}, v{vL} row_ror:{sh} {DPPF}")
        a.e(f"v_log_f32 v{vL}, v{vL}")
        a.e("s_nop 0")
        a.e(f"v_add_f32 v{vL}, v{vL}, v{vMC}")
        a.e("s_nop 0")
        a.e(f"v_readfirstlane_b32 s{sLSE}, v{vL}")
        spin_nonzero(sZF, sDB, sZO, "z")
        a.e(f"s_not_b32 s{sPAY}, s{sLSE}")
        a.e(f"s_max_u32 s{sPAY}, s{sPAY}, 1")
        a.e(f"s_atomic_swap s{sPAY}, {sWB}, s{sFO} glc")
    wave0(publish_lse, "pub")

    def load_payload():
        a.e("s_waitcnt lgkmcnt(0)")
        a.e(f"s_xor_b32 s{sFO}, s{sFO}, 128")
        a.e(f"s_load_dword s{sPAY}, {sWB}, s{sFO} glc")

    def finish_factor():
        a.e("s_waitcnt lgkmcnt(0)")
        spin_nonzero(sPAY, sWB, sFO, "p")
        a.e(f"s_not_b32 s{sPAY}, s{sPAY}")
        a.e(f"v_mov_b32 v{vU+2}, s{sPAY}")
        a.e(f"v_max_f32 v{vU}, s{sLSE}, v{vU+2}")
        a.e(f"v_sub_f32 v{vU+1}, s{sLSE}, v{vU}")
        a.e(f"v_sub_f32 v{vU+2}, v{vU+2}, v{vU}")
        a.e(f"v_sub_f32 v{vU+3}, v{vMC}, v{vU}")
        a.e(f"v_exp_f32 v{vU+1}, v{vU+1}")
        a.e(f"v_exp_f32 v{vU+2}, v{vU+2}")
        a.e(f"v_exp_f32 v{vU+3}, v{vU+3}")
        a.e(f"v_add_f32 v{vU+1}, v{vU+1}, v{vU+2}")
        a.e(f"v_rcp_f32 v{vU+1}, v{vU+1}")
        a.e(f"v_mov_b32 v{vU+4}, 0")
        a.e(f"v_mul_f32 v{vU+1}, v{vU+1}, v{vU+3}")
        a.e("s_mov_b64 exec, 1")
        a.e(f"ds_write_b32 v{vU+4}, v{vU+1} offset:{QP}")
        a.e("s_mov_b64 exec, -1")

    vNA, vNB, vCNT, vAO = vQ, vQ + 1, vQ + 2, vQ + 3
    sMD = sM1
    a.e(f"s_mov_b32 s{sMD}, 0x07fe07fe")
    a.e(f"s_mov_b32 s{sMD+1}, 0x07fe07fe")
    a.e(f"s_lshl_b32 s{sT}, s{sWAVE}, 3")
    a.e(f"v_add_u32 v{vNA}, s{sT}, v{vR}")
    a.e(f"v_mul_u32_u24 v{vNA}, 10, v{vNA}")
    a.e(f"v_add3_u32 v{vNA}, v{vNA}, v{vC}, -1")
    a.e(f"v_max_i32 v{vNA}, 0, v{vNA}")
    a.e(f"v_lshlrev_b32 v{vNA}, 2, v{vNA}")
    a.e(f"v_add_u32 v{vNB}, 160, v{vNA}")
    a.e(f"v_min_u32 v{vCNT}, 1, v{vC}")
    a.e(f"v_cvt_f32_u32 v{vCNT}, v{vCNT}")
    a.e(f"v_sub_f32 v{vCNT}, 1.0, v{vCNT}")
    a.e(f"s_lshl_b32 s{sT}, s{sWAVE}, 9")
    a.e(f"v_lshl_add_u32 v{vAO}, v{vLANE}, 2, s{sT}")
    for grp in range(NG):
        i0 = NG * 4 + grp * 4
        blk = grp // 4
        a.c(f"V group {grp}")
        flow(NG + grp)
        for t in range(4):
            onehot(vOH + 4 * t, vS + blk, bitrev4((grp % 4) * 4 + t))
        arrive(i0 + 3)
        flow_read(NG + grp)
        a.e("s_nop 1")
        for t in range(4):
            cs = "0" if (grp == 0 and t == 0) else vr(vACC, 4)
            a.e(f"v_mfma_f32_16x16x32_bf16 {vr(vACC,4)}, {vr(vOH+4*t,4)}, {vr(slot(i0+t),4)}, {cs}")
        st["consumed"] += 4
        if not args.DT:
            top_up(DSS)
        if grp == args.g_load:
            wave0(load_payload, "ldp")
        if grp == args.g_fin:
            wave0(finish_factor, "fin")
        if args.bar and (grp + 1) % args.bar == 0 and grp != NG - 1:
            a.e("s_barrier")

    assert wo_state["n"] == 20
    a.c("epilogue")
    stamp(5)
    a.e("s_nop 7")
    a.e("s_mov_b32 exec_hi, 0")
    a.e(f"ds_write_b128 v{vT0+1}, {vr(vACC,4)} offset:{OP}")
    a.e("s_mov_b64 exec, -1")
    a.e(f"v_lshrrev_b32 v{vT0+2}, 2, v{vC}")
    a.e(f"v_and_b32 v{vT0+3}, 3, v{vC}")
    a.e(f"v_lshl_add_u32 v{vT0+3}, v{vT0+3}, 2, v{vR}")
    a.e(f"s_lshl_b32 s{sT}, s{sWAVE}, 4")
    a.e(f"v_add_u32 v{vT0+3}, s{sT}, v{vT0+3}")
    a.e(f"v_lshlrev_b32 v{vT0+3}, 2, v{vT0+3}")
    a.e(f"v_lshl_add_u32 v{vT0+3}, v{vT0+2}, 10, v{vT0+3}")
    a.e(f"v_mov_b32 v{vU+4}, 0")
    a.e("s_waitcnt lgkmcnt(0)")
    a.e("s_barrier")
    a.e(f"ds_read2st64_b32 {vr(vU,2)}, v{vT0+3} offset0:{OP//256} offset1:{OP//256+2}")
    a.e(f"ds_read_b32 v{vU+2}, v{vU+4} offset:{QP}")
    assert OP % 256 == 0
    a.e(f"s_mul_i32 s{sT}, s{sWAVE}, 2560")
    a.e(f"v_add_u32 v{vT0+2}, s{sT}, v{vT0}")
    a.e("s_waitcnt lgkmcnt(0)")
    a.e(f"v_add_f32 v{vU}, v{vU}, v{vU+1}")
    for sh in (4, 8):
        a.e("s_nop 1")
        a.e(f"v_add_f32_dpp v{vU}, v{vU}, v{vU} row_ror:{sh} {DPPF}")
    a.e(f"v_mul_f32 v{vU}, v{vU}, v{vU+2}")
    a.e(f"v_cvt_pk_bf16_f32 v{vU}, v{vU}, v{vU}")
    a.e("s_nop 1")
    for rg in range(RG):
        onehot(vOH + 4 * rg, vU, rg)
    a.wait([("wo", i) for i in range(20)])
    a.e("s_nop 1")
    for rg in range(RG):
        for seg in range(5):
            cs = "0" if rg == 0 else vr(vY + 4 * seg, 4)
            a.e(f"v_mfma_f32_16x16x32_bf16 {vr(vY+4*seg,4)}, {vr(vOH+4*rg,4)}, {vr(vW+4*(rg*5+seg),4)}, {cs}")
    stamp(6)
    a.e("s_mov_b32 exec_hi, 0")
    a.e(f"s_lshl_b32 s{sT+2}, s{sGRP}, 12")
    a.e(f"s_mul_i32 s{sT+3}, s{sB}, 2560")
    a.e(f"s_mul_i32 s{sT+1}, s{sBLK}, 1280")
    a.e(f"s_add_u32 s{sT+3}, s{sT+3}, s{sT+1}")
    for seg in range(5):
        a.e(f"ds_write_b128 v{vT0+2}, {vr(vY+4*seg,4)} offset:{YP+seg*512}")
    a.e("s_mov_b64 exec, -1")
    a.e("s_waitcnt lgkmcnt(0)")
    a.e("s_barrier")
    assert YP % 256 == 0
    for m, reg in ((0, vNA), (1, vNB)):
        for k in range(4):
            a.e(f"ds_read2st64_b32 {vr(vW+8*m+2*k,2)}, v{reg} offset0:{YP//256+k*20} offset1:{YP//256+k*20+10}")
    for m in range(2):
        a.e(f"s_waitcnt lgkmcnt({4-4*m})")
        b = vW + 8 * m
        for k in range(4):
            a.e(f"v_add_f32 v{b+2*k}, v{b+2*k}, v{b+2*k+1}")
        a.e(f"v_add_f32 v{b}, v{b}, v{b+2}")
        a.e(f"v_add_f32 v{b+4}, v{b+4}, v{b+6}")
        a.e(f"v_add_f32 v{b}, v{b}, v{b+4}")
        a.e(f"v_cndmask_b32 v{b}, v{vCNT}, v{b}, {sr(sMD,2)}")
        a.e(f"v_mov_b32 v{b+1}, v{b}")
        a.e(f"buffer_atomic_add_f32 v{b+1}, v{vAO}, {sr(sWS,4)}, s{sT+2} offen offset:{WS_ACC+256*m} sc0")
    for m, reg in ((0, vNA), (1, vNB)):
        b = vW + 8 * m
        l = a.newlabel("nst")
        if m == 0:
            a.e("s_waitcnt vmcnt(0)")
        a.e(f"v_mov_b32_dpp v{b+2}, v{b+1} row_newbcast:0 {DPPF}")
        a.e(f"v_add_f32 v{b}, v{b}, v{b+1}")
        a.e(f"v_cmp_eq_f32 vcc, 0x427c0000, v{b+2}")
        a.e(f"v_cvt_pk_bf16_f32 v{b}, v{b}, v{b}")
        a.e(f"v_lshrrev_b32 v{b+3}, 1, v{reg}")
        a.e(f"s_and_b64 exec, vcc, {sr(sMD,2)}")
        a.e(f"s_cbranch_execz {l}")
        a.e(f"buffer_store_short v{b}, v{b+3}, {sr(sO,4)}, s{sT+3} offen")
        a.label(l)
        a.e("s_mov_b64 exec, -1")
    a.label("L_end")
    if inst:
        a.e("s_mov_b64 exec, -1")
        stamp(7)
        a.e(f"s_getreg_b32 s{sT+1}, hwreg(HW_REG_XCC_ID)")
        a.e(f"s_getreg_b32 s{sT+2}, hwreg(HW_REG_HW_ID)")
        a.e("s_waitcnt lgkmcnt(0)")
        a.e(f"v_mov_b32 v{vU}, 0")
        for k in range(8):
            a.e(f"v_writelane_b32 v{vU}, s{sST+2*k}, {k}")
        a.e(f"v_writelane_b32 v{vU}, s{sT+1}, 14")
        a.e(f"v_writelane_b32 v{vU}, s{sT+2}, 15")
        a.e(f"s_mul_i32 s{sT}, s{sWG}, {W}")
        a.e(f"s_add_u32 s{sT}, s{sT}, s{sWAVE}")
        a.e(f"s_lshl_b32 s{sT}, s{sT}, 6")
        a.e(f"s_add_u32 s{sT}, s{sT}, {WS_ST}")
        a.e(f"v_lshlrev_b32 v{vU+1}, 2, v{vLANE}")
        a.e("s_mov_b64 exec, 0xffff")
        a.e(f"buffer_store_dword v{vU}, v{vU+1}, {sr(sWS,4)}, s{sT} offen")
        if args.dbgt:
            a.e(f"s_cmp_lg_u32 s{sWAVE}, 0")
            a.e("s_cbranch_scc1 L_exit")
            a.e(f"s_not_b32 s{sT+1}, s{sST}")
            a.e(f"s_not_b32 s{sT+2}, s{sST+14}")
            a.e(f"v_mov_b32 v{vU+2}, 0")
            a.e(f"v_mov_b32 v{vU+3}, 0")
            items = [(1, sT+1), (2, sST+6), (3, sST+8), (12, sST+10), (13, sST+14), (14, sT+2), (15, sST+2)]
            for k, (dw, sreg) in enumerate(items):
                a.e(f"v_writelane_b32 v{vU+2}, s{sreg}, {k}")
                a.e(f"s_mov_b32 s{sT+3}, {dw*4}")
                a.e(f"v_writelane_b32 v{vU+3}, s{sT+3}, {k}")
            a.e("s_mov_b64 exec, 0x7f")
            a.e(f"buffer_atomic_umax v{vU+2}, v{vU+3}, {sr(sDBG,4)}, 0 offen")
    a.label("L_exit")
    a.e("s_endpgm")

    acc = (VGPRS + 3) // 4 * 4
    a.raw('.section .rodata,"a"')
    a.raw(".p2align 6")
    a.raw(f""".amdhsa_kernel {KNAME}
  .amdhsa_next_free_vgpr {VGPRS}
  .amdhsa_next_free_sgpr {SGPRS}
  .amdhsa_accum_offset {acc}
  .amdhsa_group_segment_fixed_size 0
  .amdhsa_kernarg_size 104
  .amdhsa_user_sgpr_count 2
  .amdhsa_user_sgpr_kernarg_segment_ptr 1
  .amdhsa_system_sgpr_workgroup_id_x 1
  .amdhsa_float_denorm_mode_32 3
.end_amdhsa_kernel
""")
    return finalize(a.text(), args)


if __name__ == "__main__":
    ap = argparse.ArgumentParser()
    ap.add_argument("-o", default=f"cdna_kernels/{NAME}.s")
    ap.add_argument("--NP", type=int, default=28)
    ap.add_argument("--D", type=int, default=6)
    ap.add_argument("--lr", type=int, default=2)
    ap.add_argument("--pat", default="0123568974+44")
    ap.add_argument("--bar", type=int, default=2)
    ap.add_argument("--hbar", type=int, default=1)
    ap.add_argument("--wo0", type=int, default=0)
    ap.add_argument("--wo1", type=int, default=0)
    ap.add_argument("--wog", type=int, default=2)
    ap.add_argument("--head", default="QKSQKQKQKQK")
    ap.add_argument("--head2", default="KK")
    ap.add_argument("--K0", type=int, default=8)
    ap.add_argument("--K1", type=int, default=16)
    ap.add_argument("--g_set", type=int, default=1)
    ap.add_argument("--g_load", type=int, default=12)
    ap.add_argument("--g_check", type=int, default=12)
    ap.add_argument("--inst", type=int, default=0)
    ap.add_argument("--DT", type=int, default=4)
    ap.add_argument("--fc", type=int, default=1)
    ap.add_argument("--scr", type=int, default=0)
    ap.add_argument("--pol", default="nnnnnnnn")
    ap.add_argument("--kh", default="nt")
    ap.add_argument("--wh", default="nt")
    ap.add_argument("--map", type=int, default=4)
    ap.add_argument("--xm", default="0")
    ap.add_argument("--DS", type=int, default=3)
    ap.add_argument("--theta", type=int, default=5)
    ap.add_argument("--fg0", type=int, default=9)
    ap.add_argument("--fg1", type=int, default=28)
    ap.add_argument("--fp", type=int, default=3)
    ap.add_argument("--g_fin", type=int, default=14)
    ap.add_argument("--g_zset", type=int, default=3)
    ap.add_argument("--g_zld", type=int, default=7)
    ap.add_argument("--boost", type=int, default=0)
    ap.add_argument("--b0", type=int, default=36)
    ap.add_argument("--b1", type=int, default=56)
    ap.add_argument("--rot", type=int, default=0)
    ap.add_argument("--cu", type=int, default=1)
    ap.add_argument("--Dh", type=int, default=0)
    ap.add_argument("--wot", type=int, default=2)
    ap.add_argument("--noq", type=int, default=0)
    ap.add_argument("--noo", type=int, default=0)
    ap.add_argument("--nosync", type=int, default=0)
    ap.add_argument("--dbgt", type=int, default=0)
    args = ap.parse_args()
    open(args.o, "w").write(gen(args))
```

```python
import sys, math, struct, argparse

NAME = "concat_heads__gqa_block_cached__gqa_block_cached__decode"
KNAME = NAME + "_kernel"


HEADER = """
; Fused decode attention for two independent blocks (A, B):  out = concat_blk( softmax(q K^T / sqrt(128)) V @ wo ),  q = x @ wq
;   every 64-byte accumulator line carries its own arrival count, the last contributor writes the bf16 output.
"""


def f32bits(x):
    return struct.unpack("<I", struct.pack("<f", x))[0]


def bitrev4(t):
    return ((t & 1) << 3) | ((t & 2) << 1) | ((t & 4) >> 1) | ((t & 8) >> 3)


class Asm:
    def __init__(self):
        self.lines = []
        self.vm = []
        self.nlabel = 0

    def e(self, s):
        self.lines.append("    " + s)

    def c(self, s):
        self.lines.append("    ; " + s)

    def label(self, s):
        self.lines.append(s + ":")

    def newlabel(self, base):
        self.nlabel += 1
        return f"L_{base}_{self.nlabel}"

    def raw(self, s):
        self.lines.append(s)

    def vmem(self, s, tag):
        self.e(s)
        self.vm.append(tag)
        assert len(self.vm) <= 58, "too many outstanding vmem ops"

    def mark(self, tag):
        self.vm.append(("mark", tag))

    def count_after(self, tag):
        idx = max(i for i, t in enumerate(self.vm) if t == tag)
        return sum(1 for t in self.vm[idx + 1:] if not (isinstance(t, tuple) and t[0] == "mark"))

    def wait(self, tags):
        if not isinstance(tags, (list, set)):
            tags = [tags]
        last = -1
        for i, t in enumerate(self.vm):
            if t in tags:
                last = i
        if last < 0:
            return
        n = sum(1 for t in self.vm[last + 1:] if not (isinstance(t, tuple) and t[0] == "mark"))
        self.e(f"s_waitcnt vmcnt({n})")
        self.vm = self.vm[last + 1:]

    def limit(self, n):
        real = [i for i, t in enumerate(self.vm) if not (isinstance(t, tuple) and t[0] == "mark")]
        if len(real) <= n:
            return
        last = real[len(real) - n - 1]
        self.e(f"s_waitcnt vmcnt({n})")
        self.vm = self.vm[last + 1:]

    def text(self):
        return "\n".join(self.lines) + "\n"


def vr(a, n=1):
    return f"v{a}" if n == 1 else f"v[{a}:{a+n-1}]"


def sr(a, n=1):
    return f"s{a}" if n == 1 else f"s[{a}:{a+n-1}]"


def finalize(text, args):
    import re
    pol = args.pol
    assert len(pol) == 8

    def sub(body, p4):
        for ch, c in zip("KVQO", p4):
            body = body.replace("@H" + ch, " nt" if c == "n" else "")
        return body
    if pol[:4] == pol[4:]:
        return sub(text, pol[:4])
    k0 = text.index("    s_cbranch_scc1 L_exit\n") + len("    s_cbranch_scc1 L_exit\n")
    k1 = text.index("L_exit:\n")
    head, body, tail = text[:k0], text[k0:k1], text[k1:]
    bit = args.polbit
    ren = lambda b, sfx: re.sub(r"\bL_(?!exit)(\w+)", lambda m: "L_" + m.group(1) + sfx, b)
    out = head + f"    s_bitcmp1_b32 s2, {bit}\n    s_cbranch_scc1 L_bodyB\n"
    out += ren(sub(body, pol[:4]), "_a") + "    s_endpgm\nL_bodyB:\n" + ren(sub(body, pol[4:]), "_b") + tail
    return out


def gen(args):
    a = Asm()
    W = 8
    NP = args.NP
    DSS = args.D
    inst = args.inst
    hint = (" " + args.wh) if args.wh else ""
    khint = (" " + args.kh) if args.kh else ""
    NG = 16
    NB = 4
    NWQ = 20
    RG = 4
    CSCALE = (128 ** -0.5) * math.log2(math.e)
    LR = args.lr

    QP = 0
    QF = QP + W * 512
    MX = QF + W * 256
    LS = MX + 64
    FF = LS + 64
    OP = MX + 256
    YP = OP + W * 512
    MODEA = YP + W * 2560
    LDS_BYTES = MODEA + 64

    WS_ACC = 0
    WS_LSE = 65536
    WS_FL = 131072
    WS_ST = 4 * 1024 * 1024
    DBG_FLAG = 16
    DBG_ZERO = 80

    vTID, vLANE, vC, vR, vKOFF, vWQOFF, vWOOFF, vXOFF, vX0, vX1 = range(10)
    vT0 = 10
    vKOFF2 = 15
    vZ = 14
    vMODE = 55
    vQ = 16
    vMASK = 20
    vACC = 24
    vS = 28
    vOH = 32
    vT = vOH
    vR2 = vOH + 4
    vU = 48
    vBUF = 56
    vW = vBUF + NP * 4
    vY = vBUF
    VGPRS = vW + NWQ * 4
    assert VGPRS <= 256, VGPRS
    vLSE = vX0
    vFLG = vX1
    vPAY = vXOFF
    vMC = vWQOFF

    sWG = 2
    sKA = 4
    sP = 8
    sOUT = 20
    sBLK, sH, sB, sSPLIT, sWAVE, sIDX = 26, 27, 28, 29, 30, 31
    sK, sV, sWQ, sWO, sX, sWS = 32, 36, 40, 44, 48, 52
    sOFF = 56
    sT = 57
    sM1, sM0 = 64, 66
    sCS = 68
    sGRP = 69
    sOK = 70
    sQO = 71
    sDBG = 72
    sO = 76
    sLSE, sPAY, sFLG, sZF, sREP, sFO, sZO, sSHO = 6, 7, 18, 19, 3, 62, 63, 61
    sXO, sKO = 72, 73
    sST = 80
    SGPRS = 80 if not inst else 100

    def stamp(k):
        if inst:
            a.e(f"s_memrealtime s[{sST+2*k}:{sST+2*k+1}]")

    DPPF = "row_mask:0xf bank_mask:0xf"

    for line in HEADER.strip("\n").split("\n"):
        a.raw(line)
    a.raw(f"; @launch grid=(256,1,1) block=({W*64},1,1) lds={LDS_BYTES}")
    a.raw('.amdgcn_target "amdgcn-amd-amdhsa--gfx950"')
    a.raw(".text")
    a.raw(f".globl {KNAME}")
    a.raw(".p2align 8")
    a.raw(f".type {KNAME},@function")
    a.label(KNAME)
    a.e(f"s_cmp_ge_u32 s{sWG}, 256")
    a.e("s_cbranch_scc1 L_exit")
    stamp(0)
    if args.scr:
        a.e(f"s_and_b32 s{sT}, s{sWG}, 3")
        a.e(f"s_lshl_b32 s{sT}, s{sT}, 3")
        a.e(f"s_bfe_u32 s{sT+1}, s{sWG}, 0x30002")
        a.e(f"s_or_b32 s{sT}, s{sT}, s{sT+1}")
        a.e(f"s_andn2_b32 s{sWG}, s{sWG}, 31")
        a.e(f"s_or_b32 s{sWG}, s{sWG}, s{sT}")
    a.e(f"s_and_b32 s{sT}, s{sWG}, 7")
    if args.map == 0:
        a.e(f"s_lshr_b32 s{sBLK}, s{sT}, 2")
    elif args.map in (1, 3):
        a.e(f"s_bfe_u32 s{sBLK}, s{sWG}, 0x10005")
        if args.map == 3:
            a.e(f"s_xor_b32 s{sT}, s{sT}, s{sBLK}")
    elif args.map == 4:
        a.e(f"s_and_b32 s{sBLK}, s{sWG}, 1")
        a.e(f"s_lshr_b32 s{sT}, s{sT}, 1")
    elif args.map == 5:
        a.e(f"s_bfe_u32 s{sBLK}, s{sWG}, 0x10001")
        a.e(f"s_lshr_b32 s{sT+1}, s{sT}, 2")
        a.e(f"s_lshl_b32 s{sT+1}, s{sT+1}, 1")
        a.e(f"s_and_b32 s{sT}, s{sT}, 1")
        a.e(f"s_or_b32 s{sT}, s{sT}, s{sT+1}")
    else:
        a.e(f"s_lshr_b32 s{sBLK}, s{sWG}, 7")
    a.e(f"s_mul_i32 s{sT+3}, s{sBLK}, 40")
    a.e(f"s_add_u32 s{sKA}, s0, s{sT+3}")
    a.e(f"s_addc_u32 s{sKA+1}, s1, 0")
    a.e(f"s_load_dwordx8 {sr(sP,8)}, {sr(sKA,2)}, 0")
    a.e(f"s_load_dwordx2 {sr(sP+8,2)}, {sr(sKA,2)}, 32")
    a.e(f"s_load_dwordx4 {sr(sOUT,4)}, s[0:1], 80")
    a.e(f"s_load_dwordx2 {sr(sOUT+4,2)}, s[0:1], 96")
    a.e(f"s_lshr_b32 s{sT+1}, s{sWG}, 3")
    if args.map in (0, 4, 5):
        a.e(f"s_lshl_b32 s{sT}, s{sT}, 3")
        a.e(f"s_lshr_b32 s{sT+2}, s{sT+1}, 2")
        a.e(f"s_add_u32 s{sT}, s{sT}, s{sT+2}")
        a.e(f"s_and_b32 s{sH}, s{sT}, 31")
    elif args.map in (1, 3):
        a.e(f"s_lshl_b32 s{sT}, s{sT}, 2")
        a.e(f"s_lshr_b32 s{sT+2}, s{sT+1}, 3")
        a.e(f"s_add_u32 s{sH}, s{sT}, s{sT+2}")
    else:
        a.e(f"s_lshl_b32 s{sT}, s{sT}, 2")
        a.e(f"s_bfe_u32 s{sT+2}, s{sT+1}, 0x20002")
        a.e(f"s_add_u32 s{sH}, s{sT}, s{sT+2}")
    a.e(f"s_lshr_b32 s{sB}, s{sT+1}, 1")
    a.e(f"s_and_b32 s{sB}, s{sB}, 1")
    a.e(f"s_and_b32 s{sSPLIT}, s{sT+1}, 1")
    a.e(f"v_and_b32 v{vLANE}, 63, v{vTID}")
    a.e(f"v_lshrrev_b32 v{vT0}, 6, v{vTID}")
    a.e(f"v_and_b32 v{vC}, 15, v{vTID}")
    a.e(f"v_readfirstlane_b32 s{sWAVE}, v{vT0}")
    a.e(f"v_lshrrev_b32 v{vR}, 4, v{vLANE}")
    a.e(f"s_lshl_b32 s{sGRP}, s{sBLK}, 1")
    a.e(f"s_add_u32 s{sGRP}, s{sGRP}, s{sB}")
    a.e(f"s_lshl_b32 s{sIDX}, s{sGRP}, 5")
    a.e(f"s_add_u32 s{sIDX}, s{sIDX}, s{sH}")
    a.e(f"s_lshl_b32 s{sIDX}, s{sIDX}, 1")
    a.e(f"s_add_u32 s{sIDX}, s{sIDX}, s{sSPLIT}")
    PT = [int(ch) for ch in args.pat[:10]]
    assert sorted(PT) == list(range(10))
    COL = [0] * 10
    for k, src in enumerate([0, 1, 6, 7, 8, 2, 3, 4, 5, 9]):
        COL[src] = 1 << PT[k]
    r = args.pat[10:]
    while r:
        assert r[0] == "+"
        COL[int(r[1])] ^= 1 << int(r[2])
        r = r[3:]
    WSMASK = COL[6] | COL[7] | COL[8] | COL[9]
    a.e(f"v_lshlrev_b32 v{vKOFF}, 4, v{vLANE}")
    a.e(f"s_mul_i32 s{sT}, s{sSPLIT}, {COL[9] << 10}")
    for k in range(3):
        a.e(f"s_bfe_u32 s{sT+1}, s{sWAVE}, 0x{(1<<16)|k:x}")
        a.e(f"s_mul_i32 s{sT+1}, s{sT+1}, {COL[6+k] << 10}")
        a.e(f"s_xor_b32 s{sT}, s{sT}, s{sT+1}")
    XM = int(args.xm, 16)
    if XM:
        a.e(f"s_mov_b32 s{sXO}, 0")
        srcs = [(sSPLIT, 0), (sB, 0)] + [(sH, k) for k in range(5)] + [(sBLK, 0)]
        for k, (reg, bit) in enumerate(srcs):
            nib = (XM >> (4 * k)) & 15
            if not nib:
                continue
            cst = 0
            for j in range(4):
                if (nib >> j) & 1:
                    cst ^= COL[2 + j]
            assert cst & 3 == 0
            a.e(f"s_bitcmp1_b32 s{reg}, {bit}")
            a.e(f"s_cselect_b32 s{sT+1}, {cst << 10}, 0")
            a.e(f"s_xor_b32 s{sXO}, s{sXO}, s{sT+1}")
        a.e(f"s_and_b32 s{sT+1}, s{sXO}, {WSMASK << 10}")
        a.e(f"s_xor_b32 s{sT}, s{sT}, s{sT+1}")
        a.e(f"s_andn2_b32 s{sXO}, s{sXO}, {WSMASK << 10}")
    a.e(f"v_add_u32 v{vKOFF}, s{sT}, v{vKOFF}")

    def tile_T(t):
        T = 0
        for k in range(6):
            if (t >> k) & 1:
                T ^= COL[k]
        return T
    OVL = sorted(set(tile_T(t) & WSMASK for t in range(64)))
    assert len(OVL) <= 2
    KOFFREG = {0: vKOFF}
    if len(OVL) == 2:
        KOFFREG[OVL[1]] = vKOFF2
        a.e(f"v_xor_b32 v{vKOFF2}, {OVL[1] << 10}, v{vKOFF}")
    a.e(f"s_mul_i32 s{sT}, s{sWAVE}, {NWQ*4}")
    a.e(f"v_add_u32 v{vWQOFF}, s{sT}, v{vR}")
    a.e(f"v_lshlrev_b32 v{vWQOFF}, 13, v{vWQOFF}")
    a.e(f"v_lshl_add_u32 v{vWQOFF}, v{vC}, 4, v{vWQOFF}")
    a.e(f"s_mov_b32 s{sK+2}, {1 << 20}")
    a.e(f"s_mov_b32 s{sK+3}, 0x20000")
    a.e(f"s_lshl_b32 s{sT}, s{sH}, 8")
    a.e(f"s_sub_u32 s{sWQ+2}, {640*8192}, s{sT}")
    a.e(f"s_mov_b32 s{sWQ+3}, 0x20000")
    a.e(f"s_bfe_u32 s{sT+1}, s{sIDX}, 0x60001")
    a.e(f"s_lshl_b32 s{sT+1}, s{sT+1}, 20")
    a.e("s_waitcnt lgkmcnt(0)")
    stamp(1)
    a.e(f"s_add_u32 s{sWQ}, s{sP+6}, s{sT}")
    a.e(f"s_addc_u32 s{sWQ+1}, s{sP+7}, 0")
    a.e(f"s_add_u32 s{sK}, s{sP+2}, s{sT+1}")
    a.e(f"s_addc_u32 s{sK+1}, s{sP+3}, 0")

    stream = [("K", t) for t in range(NG * 4)] + [("V", t) for t in range(NG * 4)]
    st = {"issued": 0, "consumed": 0, "soff": None}

    def set_soff(v):
        if v == 0:
            return "0"
        if st["soff"] != v:
            a.e(f"s_mov_b32 s{sOFF}, {v}")
            st["soff"] = v
        return f"s{sOFF}"

    def slot(i):
        return vBUF + (i % NP) * 4

    def issue_one(lim=0):
        if lim:
            a.limit(lim - 1)
        i = st["issued"]
        kind, t = stream[i]
        buf = slot(i)
        if True:
            srd = sK if kind == "K" else sV
            T = tile_T(t)
            koff = KOFFREG[T & WSMASK]
            off = (T & ~WSMASK) << 10
            imm = off % 4096
            if XM:
                if st.get("koff") != off - imm:
                    a.e(f"s_xor_b32 s{sKO}, s{sXO}, {off - imm}")
                    st["koff"] = off - imm
                sos = f"s{sKO}"
            else:
                sos = set_soff(off - imm)
            immS = f" offset:{imm}" if imm else ""
            a.vmem(f"buffer_load_dwordx4 {vr(buf,4)}, v{koff}, {sr(srd,4)}, {sos} offen{immS}@H{kind}", ("S", i))
        st["issued"] = i + 1

    def top_up(limit):
        limit = min(limit, NP)
        while st["issued"] < len(stream) and st["issued"] - st["consumed"] < limit:
            issue_one()

    def arrive(i_last):
        if not args.DT:
            a.wait(("S", i_last))
            return
        def one():
            if wo_state["n"] < 20 and args.wot and st["issued"] % args.wot == 0 and qst["done"] == 5:
                issue_wo(1)
            issue_one()
        if st["issued"] - (i_last + 1) >= args.DT:
            n = args.cu if st.get("primed") else args.DT
            for _ in range(n):
                if st["issued"] < len(stream) and st["issued"] - st["consumed"] < NP:
                    a.limit(args.DT - 1)
                    one()
                    st["primed"] = True
            a.wait(("S", i_last))
            return
        for i in range(i_last - 3, i_last + 1):
            a.wait(("S", i))
            while st["issued"] < len(stream) and st["issued"] - (i + 1) < args.DT and st["issued"] - st["consumed"] < NP:
                if args.fc and fcs["on"] and True:
                    l = a.newlabel("sh")
                    a.e(f"s_cbranch_vccnz {l}")
                    a.e(f"s_waitcnt vmcnt({args.DS - 1})")
                    a.label(l)
                one()

    fcs = {"on": False, "k": 0, "pend": None, "rd": False}

    def flow(G):
        if not args.fc:
            return
        if fcs["rd"]:
            a.e("s_waitcnt lgkmcnt(0)")
            a.e(f"v_readfirstlane_b32 s{sT}, v{vMODE}")
            a.e("s_nop 3")
            a.e(f"s_cmp_lg_u32 s{sT}, 0")
            a.e("s_cselect_b64 vcc, -1, 0")
            fcs["on"] = True
            fcs["rd"] = False
        if fcs["pend"] is not None:
            k = fcs["pend"]
            def wr():
                a.e("s_waitcnt lgkmcnt(0)")
                a.e(f"s_cmp_ge_u32 s{sREP}, {args.theta}")
                a.e(f"s_cselect_b32 s{sT}, 1, 0")
                a.e(f"v_mov_b32 v{vMODE}, s{sT}")
                a.e(f"ds_write_b32 v{vZ}, v{vMODE} offset:{MODEA}")
            wave0(wr, "fw")
            fcs["pend"] = None
        if G >= args.fg0 and G <= args.fg1 and (G - args.fg0) % args.fp == 0:
            def rep():
                l = a.newlabel("nf")
                a.e("s_waitcnt lgkmcnt(0)")
                a.e(f"s_mov_b32 s{sREP}, 8")
                a.e(f"s_cmp_eq_u32 s{sOK}, 0")
                a.e(f"s_cbranch_scc1 {l}")
                a.e(f"s_mov_b32 s{sREP}, 1")
                a.e(f"s_atomic_add s{sREP}, {sr(sOUT+4,2)}, s{sSHO} glc")
                a.label(l)
                a.e(f"s_add_u32 s{sSHO}, s{sSHO}, 8192")
            wave0(rep, "fr")
            fcs["pend"] = fcs["k"]
            fcs["k"] += 1

    def flow_read(G):
        if args.fc and G > args.fg0 and G < 31:
            a.e(f"ds_read_b32 v{vMODE}, v{vZ} offset:{MODEA}")
            fcs["rd"] = True

    def wave0(fn, nm):
        if args.nosync:
            return
        l = a.newlabel(nm)
        a.e(f"s_cmp_lg_u32 s{sWAVE}, 0")
        a.e(f"s_cbranch_scc1 {l}")
        fn()
        a.label(l)

    NCK = len(range(args.fg0, args.fg1 + 1, args.fp))

    def setup_rest():
        for srd, n in ((sX, 1280), (sV, 1 << 20), (sWO, 128 * 1280), (sWS, 8 << 20), (sO, 5120)):
            a.e(f"s_mov_b32 s{srd+2}, {n}")
            a.e(f"s_mov_b32 s{srd+3}, 0x20000")
        a.e(f"s_mul_i32 s{sT+2}, s{sB}, 1280")
        a.e(f"s_mul_i32 s{sT+3}, s{sH}, {128*1280}")
        a.e(f"s_mul_i32 s{sT}, s{sWAVE}, {NWQ*4}")
        a.e(f"v_lshl_add_u32 v{vXOFF}, v{vC}, 2, v{vR}")
        a.e(f"v_add_u32 v{vXOFF}, s{sT}, v{vXOFF}")
        a.e(f"v_lshlrev_b32 v{vXOFF}, 1, v{vXOFF}")
        a.e(f"v_add_u32 v{vX1}, 128, v{vXOFF}")
        a.e(f"s_mul_i32 s{sT}, s{sWAVE}, {RG*4}")
        a.e(f"v_add_u32 v{vWOOFF}, s{sT}, v{vR}")
        a.e(f"v_mul_u32_u24 v{vWOOFF}, 1280, v{vWOOFF}")
        a.e(f"v_lshl_add_u32 v{vWOOFF}, v{vC}, 4, v{vWOOFF}")
        a.e(f"s_add_u32 s{sX}, s{sP}, s{sT+2}")
        a.e(f"s_addc_u32 s{sX+1}, s{sP+1}, 0")
        a.vmem(f"buffer_load_ushort v{vX0}, v{vXOFF}, {sr(sX,4)}, 0 offen nt", "x")
        a.vmem(f"buffer_load_ushort v{vX1}, v{vX1}, {sr(sX,4)}, 0 offen nt", "x")
        a.e(f"s_add_u32 s{sV}, s{sP+4}, s{sT+1}")
        a.e(f"s_addc_u32 s{sV+1}, s{sP+5}, 0")
        a.e(f"s_add_u32 s{sWO}, s{sP+8}, s{sT+3}")
        a.e(f"s_addc_u32 s{sWO+1}, s{sP+9}, 0")
        a.e(f"s_mov_b32 s{sWS}, s{sOUT+4}")
        a.e(f"s_mov_b32 s{sWS+1}, s{sOUT+5}")
        a.e(f"s_mov_b32 s{sO}, s{sOUT}")
        a.e(f"s_mov_b32 s{sO+1}, s{sOUT+1}")
        lz = a.newlabel("nozero")
        a.e(f"s_and_b32 s{sT}, s{sIDX}, 63")
        a.e(f"s_cmp_lg_u32 s{sT}, 0")
        a.e(f"s_cbranch_scc1 {lz}")
        a.e(f"s_cmp_lg_u32 s{sWAVE}, 0")
        a.e(f"s_cbranch_scc1 {lz}")
        for k in range(4):
            a.e(f"v_mov_b32 v{vU+k}, 0")
        a.e(f"v_lshlrev_b32 v{vU+4}, 4, v{vLANE}")
        a.e(f"s_lshl_b32 s{sT}, s{sGRP}, 12")
        for k in range(4):
            a.e(f"buffer_store_dwordx4 {vr(vU,4)}, v{vU+4}, {sr(sWS,4)}, s{sT} offen offset:{WS_ACC+1024*k} sc1")
        a.e(f"v_lshlrev_b32 v{vU+4}, 7, v{vLANE}")
        a.e(f"s_lshl_b32 s{sT}, s{sGRP}, 13")
        a.e(f"s_add_u32 s{sT}, s{sT}, {WS_LSE}")
        a.e(f"buffer_store_dword v{vU}, v{vU+4}, {sr(sWS,4)}, s{sT} offen sc1")
        if args.fc:
            a.e(f"s_cmp_lg_u32 s{sGRP}, 0")
            a.e(f"s_cbranch_scc1 {lz}")
            a.e(f"v_lshlrev_b32 v{vU+4}, 8, v{vLANE}")
            for k in range((NCK * 32 + 63) // 64):
                a.e(f"s_mov_b32 s{sT}, {WS_FL + k * 16384}")
                a.e(f"buffer_store_dword v{vU}, v{vU+4}, {sr(sWS,4)}, s{sT} offen sc1")
        a.label(lz)
        a.mark("zst")

    wo_state = {"n": 0}

    def issue_wo(n):
        for _ in range(n):
            k = wo_state["n"]
            if k >= 20:
                return
            rg, seg = divmod(k, 5)
            sos = set_soff(rg * 5120)
            immS = f" offset:{seg*256}" if seg else ""
            if not args.noo: a.vmem(f"buffer_load_dwordx4 {vr(vW+4*k,4)}, v{vWOOFF}, {sr(sWO,4)}, {sos} offen{immS}@HO", ("wo", k))
            wo_state["n"] = k + 1

    qst = {"issued": 0, "done": 0, "prep": False}

    def issue_q(n=4):
        for _ in range(n):
            t = qst["issued"]
            if args.Dh:
                a.limit(args.Dh - 1)
            sos = f"s{sQO}" if args.rot else set_soff(t * 32768)
            if not args.noq: a.vmem(f"buffer_load_dwordx4 {vr(vW+4*t,4)}, v{vWQOFF}, {sr(sWQ,4)}, {sos} offen@HQ", ("Q", t))
            if args.rot and t < 19:
                a.e(f"s_add_u32 s{sQO}, s{sQO}, 32768")
                if t % 5 == 4:
                    a.e(f"s_cmp_eq_u32 s{sQO}, {20*32768}")
                    a.e(f"s_cselect_b32 s{sQO}, 0, s{sQO}")
            qst["issued"] += 1

    def onehot(dst, src, lane):
        for j in range(4):
            a.e(f"v_and_b32_dpp v{dst+j}, v{src}, v{vMASK+j} row_newbcast:{lane} {DPPF}")

    def consume_q():
        if not qst["prep"]:
            prep()
            a.wait("x")
            a.e(f"v_lshl_or_b32 v{vX0}, v{vX0}, 16, v{vX0}")
            a.e(f"v_lshl_or_b32 v{vX1}, v{vX1}, 16, v{vX1}")
            a.e("s_nop 1")
            qst["prep"] = True
        g0 = qst["done"] * 4
        for t in range(4):
            i = g0 + t
            onehot(vOH + 4 * t, vX0 if i < 16 else vX1, i % 16)
        a.wait(("Q", g0 + 3))
        a.e("s_nop 1")
        for t in range(4):
            i = g0 + t
            cs = "0" if i == 0 else vr(vACC, 4)
            a.e(f"v_mfma_f32_16x16x32_bf16 {vr(vACC,4)}, {vr(vOH+4*t,4)}, {vr(vW+4*i,4)}, {cs}")
        qst["done"] += 1

    def run_seq(seq):
        for ch in seq:
            if ch == "Q":
                issue_q()
            elif ch == "K":
                for _ in range(4):
                    issue_one(args.Dh)
                assert st["issued"] - st["consumed"] <= NP
            elif ch == "k":
                for _ in range(2):
                    issue_one(args.Dh)
                assert st["issued"] - st["consumed"] <= NP
            elif ch == "q":
                issue_q(1)
            elif ch == "x":
                issue_one(args.Dh)
                assert st["issued"] - st["consumed"] <= NP
            elif ch == "S":
                setup_rest()
            elif ch == "B":
                a.e("s_barrier")
            elif ch == "M":
                consume_q()
            elif ch == "O":
                assert wo_state["n"] + 4 <= qst["done"] * 4
                issue_wo(4)
            else:
                raise ValueError(ch)

    def prep():
        a.e(f"v_and_b32 v{vT0}, 1, v{vC}")
        a.e(f"v_lshlrev_b32 v{vT0}, 4, v{vT0}")
        a.e(f"v_mov_b32 v{vT0+1}, 0xffff")
        a.e(f"v_lshlrev_b32 v{vT0+1}, v{vT0}, v{vT0+1}")
        a.e(f"v_lshrrev_b32 v{vT0+2}, 1, v{vC}")
        for j in range(4):
            a.e(f"v_cmp_eq_u32 vcc, {j}, v{vT0+2}")
            a.e("s_nop 1")
            a.e(f"v_cndmask_b32 v{vMASK+j}, 0, v{vT0+1}, vcc")
        a.e(f"s_mov_b32 s{sM1}, 0xcccccccc")
        a.e(f"s_mov_b32 s{sM1+1}, 0xcccccccc")
        a.e(f"s_mov_b32 s{sM0}, 0xaaaaaaaa")
        a.e(f"s_mov_b32 s{sM0+1}, 0xaaaaaaaa")
        a.e(f"s_mov_b32 s{sCS}, 0x{f32bits(CSCALE):08x}")
        a.e(f"v_lshlrev_b32 v{vT0}, 5, v{vC}")
        a.e(f"v_lshl_add_u32 v{vT0}, v{vR}, 4, v{vT0}")
        a.e(f"s_lshl_b32 s{sT}, s{sWAVE}, 9")
        a.e(f"v_add_u32 v{vT0+1}, s{sT}, v{vT0}")
        a.e(f"s_lshl_b32 s{sZO}, s{sGRP}, 2")
        a.e(f"s_lshl_b32 s{sFO}, s{sIDX}, 7")
        a.e(f"s_add_u32 s{sFO}, s{sFO}, {WS_LSE}")
        a.e(f"s_and_b32 s{sT}, s{sWG}, 7")
        a.e(f"s_mul_i32 s{sT}, s{sT}, 5")
        a.e(f"s_lshr_b32 s{sSHO}, s{sWG}, 3")
        a.e(f"s_add_u32 s{sSHO}, s{sSHO}, s{sT}")
        a.e(f"s_and_b32 s{sSHO}, s{sSHO}, 31")
        a.e(f"s_lshl_b32 s{sSHO}, s{sSHO}, 8")
        a.e(f"s_add_u32 s{sSHO}, s{sSHO}, {WS_FL}")
        a.e(f"s_mov_b32 s{sOK}, 0")
        a.e("s_mov_b64 vcc, -1")
        if args.fc:
            a.e(f"v_mov_b32 v{vZ}, 0")
            a.e(f"v_mov_b32 v{vMODE}, 1")
            a.e(f"ds_write_b32 v{vZ}, v{vMODE} offset:{MODEA}")

    run_seq(args.head)
    assert qst["issued"] == 20
    while qst["done"] < 5:
        consume_q()
    stamp(2)
    def zset():
        l = a.newlabel("nz")
        a.e(f"s_and_b32 s{sT}, s{sIDX}, 63")
        a.e(f"s_cmp_lg_u32 s{sT}, 0")
        a.e(f"s_cbranch_scc1 {l}")
        a.e(f"s_mov_b32 s{sZF}, 1")
        a.e(f"s_atomic_or s{sZF}, {sr(sOUT+2,2)}, s{sZO} glc")
        a.label(l)
    assert ("mark", "zst") not in a.vm
    wave0(zset, "zs")
    a.e("s_nop 7")
    a.e("s_mov_b32 exec_hi, 0")
    a.e(f"ds_write_b128 v{vT0+1}, {vr(vACC,4)} offset:{QP}")
    a.e("s_mov_b64 exec, -1")
    run_seq(args.head2)
    a.e(f"v_lshlrev_b32 v{vT0+2}, 3, v{vLANE}")
    a.e("s_waitcnt lgkmcnt(0)")
    a.e("s_barrier")
    for w in range(W):
        a.e(f"ds_read_b64 {vr(vOH+2*w,2)}, v{vT0+2} offset:{QP+w*512}")
    a.e(f"s_lshl_b32 s{sT}, s{sWAVE}, 8")
    a.e(f"v_lshlrev_b32 v{vT0+2}, 2, v{vLANE}")
    a.e(f"v_add_u32 v{vT0+2}, s{sT}, v{vT0+2}")
    a.e(f"v_lshlrev_b32 v{vT0+3}, 4, v{vC}")
    a.e(f"v_add_u32 v{vT0+3}, s{sT}, v{vT0+3}")
    a.e("s_waitcnt lgkmcnt(0)")
    for k in range(1, W):
        a.e(f"v_add_f32 v{vOH}, v{vOH}, v{vOH+2*k}")
        a.e(f"v_add_f32 v{vOH+1}, v{vOH+1}, v{vOH+2*k+1}")
    a.e(f"v_cvt_pk_bf16_f32 v{vU}, v{vOH}, v{vOH+1}")
    a.e(f"ds_write_b32 v{vT0+2}, v{vU} offset:{QF}")
    a.e("s_waitcnt lgkmcnt(0)")
    a.e(f"ds_read_b128 {vr(vQ,4)}, v{vT0+3} offset:{QF}")
    a.e("s_waitcnt lgkmcnt(0)")
    stamp(3)

    for grp in range(NG):
        i0 = grp * 4
        a.c(f"K group {grp}")
        flow(grp)
        arrive(i0 + 3)
        flow_read(grp)
        if grp == args.g_zld:
            def zld():
                a.e("s_waitcnt lgkmcnt(0)")
                a.e(f"s_load_dword s{sZF}, {sr(sOUT+2,2)}, s{sZO}")
                if args.fc:
                    a.e(f"s_load_dword s{sOK}, {sr(sOUT+2,2)}, 0")
            wave0(zld, "zl")
        for j in range(4):
            for t in range(4):
                cs = "0" if j == 0 else f"v{vT+t}"
                a.e(f"v_dot2_f32_bf16 v{vT+t}, v{slot(i0+t)+j}, v{vQ+j}, {cs}")
        st["consumed"] += 4
        if not args.DT:
            issue_wo(args.wog)
            top_up(DSS)
        a.e("s_nop 2")
        a.e(f"v_add_f32_dpp v{vT}, v{vT}, v{vT} row_ror:8 row_mask:0xf bank_mask:0x3")
        a.e(f"v_add_f32_dpp v{vT+2}, v{vT+2}, v{vT+2} row_ror:8 row_mask:0xf bank_mask:0x3")
        a.e(f"v_add_f32_dpp v{vT}, v{vT+1}, v{vT+1} row_ror:8 row_mask:0xf bank_mask:0xc")
        a.e(f"v_add_f32_dpp v{vT+2}, v{vT+3}, v{vT+3} row_ror:8 row_mask:0xf bank_mask:0xc")
        a.e("s_nop 1")
        gq = grp % 4
        a.e(f"v_add_f32_dpp v{vR2+gq}, v{vT}, v{vT} row_half_mirror row_mask:0xf bank_mask:0x5")
        a.e(f"v_add_f32_dpp v{vR2+gq}, v{vT+2}, v{vT+2} row_half_mirror row_mask:0xf bank_mask:0xa")
        if gq == 3:
            blk = grp // 4
            a.e("s_nop 1")
            for k in range(4):
                a.e(f"v_add_f32_dpp v{vR2+k}, v{vR2+k}, v{vR2+k} quad_perm:[2,3,0,1] {DPPF}")
            a.e(f"v_cndmask_b32 v{vR2}, v{vR2}, v{vR2+1}, {sr(sM1,2)}")
            a.e(f"v_cndmask_b32 v{vR2+2}, v{vR2+2}, v{vR2+3}, {sr(sM1,2)}")
            a.e("s_nop 1")
            a.e(f"v_add_f32_dpp v{vR2}, v{vR2}, v{vR2} quad_perm:[1,0,3,2] {DPPF}")
            a.e(f"v_add_f32_dpp v{vR2+2}, v{vR2+2}, v{vR2+2} quad_perm:[1,0,3,2] {DPPF}")
            a.e(f"v_cndmask_b32 v{vS+blk}, v{vR2}, v{vR2+2}, {sr(sM0,2)}")
        if args.bar and (grp + 1) % args.bar == 0 and grp != NG - 1:
            a.e("s_barrier")

    for _ in range(args.pre):
        issue_one()
    a.c("softmax")
    stamp(4)
    vM = vU
    a.e(f"v_max_f32 v{vM}, v{vS}, v{vS+1}")
    a.e(f"v_max3_f32 v{vM}, v{vM}, v{vS+2}, v{vS+3}")
    for sh in (8, 4, 2, 1):
        a.e("s_nop 1")
        a.e(f"v_max_f32_dpp v{vM}, v{vM}, v{vM} row_ror:{sh} {DPPF}")
    a.e(f"s_lshl_b32 s{sT}, s{sWAVE}, 4")
    a.e(f"v_lshl_add_u32 v{vT0+2}, v{vR}, 2, s{sT}")
    a.e("s_mov_b32 exec_lo, 0x00010001")
    a.e("s_mov_b32 exec_hi, 0x00010001")
    a.e(f"ds_write_b32 v{vT0+2}, v{vM} offset:{MX}")
    a.e("s_mov_b64 exec, -1")
    a.e(f"v_lshlrev_b32 v{vT0+3}, 3, v{vC}")
    a.e("s_waitcnt lgkmcnt(0)")
    a.e("s_barrier")
    a.e(f"ds_read_b64 {vr(vU+2,2)}, v{vT0+3} offset:{MX}")
    a.e("s_waitcnt lgkmcnt(0)")
    a.e(f"v_max_f32 v{vM}, v{vU+2}, v{vU+3}")
    for sh in (8, 4, 2, 1):
        a.e("s_nop 1")
        a.e(f"v_max_f32_dpp v{vM}, v{vM}, v{vM} row_ror:{sh} {DPPF}")
    vL = vU + 2
    a.e(f"v_mul_f32 v{vMC}, s{sCS}, v{vM}")
    for k in range(NB):
        a.e(f"v_fma_f32 v{vS+k}, v{vS+k}, s{sCS}, -v{vMC}")
    for k in range(NB):
        a.e(f"v_exp_f32 v{vS+k}, v{vS+k}")
    a.e("s_nop 0")
    for k in range(NB):
        a.e(f"v_cvt_pk_bf16_f32 v{vS+k}, v{vS+k}, v{vS+k}")
    for k in range(NB):
        a.e(f"v_and_b32 v{vT+k}, 0xffff0000, v{vS+k}")
    a.e(f"v_add_f32 v{vL}, v{vT}, v{vT+1}")
    a.e(f"v_add_f32 v{vT+2}, v{vT+2}, v{vT+3}")
    a.e(f"v_add_f32 v{vL}, v{vL}, v{vT+2}")
    for sh in (8, 4, 2, 1):
        a.e("s_nop 1")
        a.e(f"v_add_f32_dpp v{vL}, v{vL}, v{vL} row_ror:{sh} {DPPF}")
    a.e("s_mov_b32 exec_lo, 0x00010001")
    a.e("s_mov_b32 exec_hi, 0x00010001")
    a.e(f"ds_write_b32 v{vT0+2}, v{vL} offset:{MX+128}")
    a.e("s_mov_b64 exec, -1")
    if args.g_pub == 0:
        a.e("s_waitcnt lgkmcnt(0)")
        a.e("s_barrier")

    def wave0(fn, nm):
        if args.nosync:
            return
        l = a.newlabel(nm)
        a.e(f"s_cmp_lg_u32 s{sWAVE}, 0")
        a.e(f"s_cbranch_scc1 {l}")
        fn()
        a.label(l)

    sDB = sr(sOUT + 2, 2)
    sWB = sr(sOUT + 4, 2)

    def spin_nonzero(reg, base, off, nm):
        lok = a.newlabel(nm + "ok")
        lsp = a.newlabel(nm + "sp")
        a.e(f"s_cmp_lg_u32 s{reg}, 0")
        a.e(f"s_cbranch_scc1 {lok}")
        a.e(f"s_mov_b32 s{sT+3}, 0")
        a.label(lsp)
        a.e(f"s_atomic_or s{reg}, {base}, s{off} glc")
        a.e(f"s_add_u32 s{sT+3}, s{sT+3}, 1")
        a.e(f"s_lshr_b32 s{sT+1}, s{sT+3}, 18")
        a.e("s_waitcnt lgkmcnt(0)")
        a.e(f"s_or_b32 s{sT+1}, s{sT+1}, s{reg}")
        a.e(f"s_cmp_eq_u32 s{sT+1}, 0")
        a.e(f"s_cbranch_scc1 {lsp}")
        a.label(lok)

    def publish_lse():
        a.e(f"ds_read_b64 {vr(vU+2,2)}, v{vT0+3} offset:{MX+128}")
        a.e("s_waitcnt lgkmcnt(0)")
        a.e(f"v_add_f32 v{vL}, v{vU+2}, v{vU+3}")
        for sh in (8, 4, 2, 1):
            a.e("s_nop 1")
            a.e(f"v_add_f32_dpp v{vL}, v{vL}, v{vL} row_ror:{sh} {DPPF}")
        a.e(f"v_log_f32 v{vL}, v{vL}")
        a.e("s_nop 0")
        a.e(f"v_add_f32 v{vL}, v{vL}, v{vMC}")
        a.e("s_nop 0")
        a.e(f"v_readfirstlane_b32 s{sLSE}, v{vL}")
        if args.slow:
            a.e(f"s_mov_b32 s{sZF}, 0")
        spin_nonzero(sZF, sDB, sZO, "z")
        a.e(f"s_not_b32 s{sPAY}, s{sLSE}")
        a.e(f"s_max_u32 s{sPAY}, s{sPAY}, 1")
        a.e(f"s_atomic_swap s{sPAY}, {sWB}, s{sFO} glc")

    def load_payload():
        a.e("s_waitcnt lgkmcnt(0)")
        a.e(f"s_xor_b32 s{sFO}, s{sFO}, 128")
        a.e(f"s_load_dword s{sPAY}, {sWB}, s{sFO} glc")

    def finish_factor():
        a.e("s_waitcnt lgkmcnt(0)")
        if args.slow:
            a.e(f"s_mov_b32 s{sPAY}, 0")
        spin_nonzero(sPAY, sWB, sFO, "p")
        a.e(f"s_not_b32 s{sPAY}, s{sPAY}")
        a.e(f"v_mov_b32 v{vU+2}, s{sPAY}")
        a.e(f"v_max_f32 v{vU}, s{sLSE}, v{vU+2}")
        a.e(f"v_sub_f32 v{vU+1}, s{sLSE}, v{vU}")
        a.e(f"v_sub_f32 v{vU+2}, v{vU+2}, v{vU}")
        a.e(f"v_sub_f32 v{vU+3}, v{vMC}, v{vU}")
        a.e(f"v_exp_f32 v{vU+1}, v{vU+1}")
        a.e(f"v_exp_f32 v{vU+2}, v{vU+2}")
        a.e(f"v_exp_f32 v{vU+3}, v{vU+3}")
        a.e(f"v_add_f32 v{vU+1}, v{vU+1}, v{vU+2}")
        a.e(f"v_rcp_f32 v{vU+1}, v{vU+1}")
        a.e(f"v_mov_b32 v{vU+4}, 0")
        a.e(f"v_mul_f32 v{vU+1}, v{vU+1}, v{vU+3}")
        a.e("s_mov_b64 exec, 1")
        a.e(f"ds_write_b32 v{vU+4}, v{vU+1} offset:{QP}")
        a.e("s_mov_b64 exec, -1")

    vNA, vNB, vCNT, vAO = vQ, vQ + 1, vQ + 2, vQ + 3
    sMD = sM1
    a.e(f"s_mov_b32 s{sMD}, 0x07fe07fe")
    a.e(f"s_mov_b32 s{sMD+1}, 0x07fe07fe")
    a.e(f"s_lshl_b32 s{sT}, s{sWAVE}, 3")
    a.e(f"v_add_u32 v{vNA}, s{sT}, v{vR}")
    a.e(f"v_mul_u32_u24 v{vNA}, 10, v{vNA}")
    a.e(f"v_add3_u32 v{vNA}, v{vNA}, v{vC}, -1")
    a.e(f"v_max_i32 v{vNA}, 0, v{vNA}")
    a.e(f"v_lshlrev_b32 v{vNA}, 2, v{vNA}")
    a.e(f"v_add_u32 v{vNB}, 160, v{vNA}")
    a.e(f"v_min_u32 v{vCNT}, 1, v{vC}")
    a.e(f"v_cvt_f32_u32 v{vCNT}, v{vCNT}")
    a.e(f"v_sub_f32 v{vCNT}, 1.0, v{vCNT}")
    a.e(f"s_lshl_b32 s{sT}, s{sWAVE}, 9")
    a.e(f"v_lshl_add_u32 v{vAO}, v{vLANE}, 2, s{sT}")
    for grp in range(NG):
        i0 = NG * 4 + grp * 4
        blk = grp // 4
        a.c(f"V group {grp}")
        flow(NG + grp)
        if grp == args.g_pub:
            wave0(publish_lse, "pub")
        if grp == args.g_load:
            wave0(load_payload, "ldp")
        if grp == args.g_fin:
            wave0(finish_factor, "fin")
        for t in range(4):
            onehot(vOH + 4 * t, vS + blk, bitrev4((grp % 4) * 4 + t))
        arrive(i0 + 3)
        flow_read(NG + grp)
        a.e("s_nop 1")
        for t in range(4):
            cs = "0" if (grp == 0 and t == 0) else vr(vACC, 4)
            a.e(f"v_mfma_f32_16x16x32_bf16 {vr(vACC,4)}, {vr(vOH+4*t,4)}, {vr(slot(i0+t),4)}, {cs}")
        st["consumed"] += 4
        if not args.DT:
            top_up(DSS)
        if grp + 1 == args.g_pub:
            a.e("s_waitcnt lgkmcnt(0)")
            assert args.bar and (grp + 1) % args.bar == 0
        if args.bar and (grp + 1) % args.bar == 0 and grp != NG - 1:
            a.e("s_barrier")

    assert wo_state["n"] == 20
    a.c("epilogue")
    stamp(5)
    a.e("s_nop 7")
    a.e("s_mov_b32 exec_hi, 0")
    a.e(f"ds_write_b128 v{vT0+1}, {vr(vACC,4)} offset:{OP}")
    a.e("s_mov_b64 exec, -1")
    a.e(f"v_lshrrev_b32 v{vT0+2}, 2, v{vC}")
    a.e(f"v_and_b32 v{vT0+3}, 3, v{vC}")
    a.e(f"v_lshl_add_u32 v{vT0+3}, v{vT0+3}, 2, v{vR}")
    a.e(f"s_lshl_b32 s{sT}, s{sWAVE}, 4")
    a.e(f"v_add_u32 v{vT0+3}, s{sT}, v{vT0+3}")
    a.e(f"v_lshlrev_b32 v{vT0+3}, 2, v{vT0+3}")
    a.e(f"v_lshl_add_u32 v{vT0+3}, v{vT0+2}, 10, v{vT0+3}")
    a.e(f"v_mov_b32 v{vU+4}, 0")
    a.e("s_waitcnt lgkmcnt(0)")
    a.e("s_barrier")
    a.e(f"ds_read2st64_b32 {vr(vU,2)}, v{vT0+3} offset0:{OP//256} offset1:{OP//256+2}")
    a.e(f"ds_read_b32 v{vU+2}, v{vU+4} offset:{QP}")
    assert OP % 256 == 0
    a.e(f"s_mul_i32 s{sT}, s{sWAVE}, 2560")
    a.e(f"v_add_u32 v{vT0+2}, s{sT}, v{vT0}")
    a.e("s_waitcnt lgkmcnt(0)")
    a.e(f"v_add_f32 v{vU}, v{vU}, v{vU+1}")
    for sh in (4, 8):
        a.e("s_nop 1")
        a.e(f"v_add_f32_dpp v{vU}, v{vU}, v{vU} row_ror:{sh} {DPPF}")
    a.e(f"v_mul_f32 v{vU}, v{vU}, v{vU+2}")
    a.e(f"v_cvt_pk_bf16_f32 v{vU}, v{vU}, v{vU}")
    a.e("s_nop 1")
    for rg in range(RG):
        onehot(vOH + 4 * rg, vU, rg)
    a.wait([("wo", i) for i in range(20)])
    a.e("s_nop 1")
    for rg in range(RG):
        for seg in range(5):
            cs = "0" if rg == 0 else vr(vY + 4 * seg, 4)
            a.e(f"v_mfma_f32_16x16x32_bf16 {vr(vY+4*seg,4)}, {vr(vOH+4*rg,4)}, {vr(vW+4*(rg*5+seg),4)}, {cs}")
    stamp(6)
    a.e("s_mov_b32 exec_hi, 0")
    a.e(f"s_lshl_b32 s{sT+2}, s{sGRP}, 12")
    a.e(f"s_mul_i32 s{sT+3}, s{sB}, 2560")
    a.e(f"s_mul_i32 s{sT+1}, s{sBLK}, 1280")
    a.e(f"s_add_u32 s{sT+3}, s{sT+3}, s{sT+1}")
    for seg in range(5):
        a.e(f"ds_write_b128 v{vT0+2}, {vr(vY+4*seg,4)} offset:{YP+seg*512}")
    a.e("s_mov_b64 exec, -1")
    a.e("s_waitcnt lgkmcnt(0)")
    a.e("s_barrier")
    assert YP % 256 == 0
    for m, reg in ((0, vNA), (1, vNB)):
        for k in range(4):
            a.e(f"ds_read2st64_b32 {vr(vW+8*m+2*k,2)}, v{reg} offset0:{YP//256+k*20} offset1:{YP//256+k*20+10}")
    for m in range(2):
        a.e(f"s_waitcnt lgkmcnt({4-4*m})")
        b = vW + 8 * m
        for k in range(4):
            a.e(f"v_add_f32 v{b+2*k}, v{b+2*k}, v{b+2*k+1}")
        a.e(f"v_add_f32 v{b}, v{b}, v{b+2}")
        a.e(f"v_add_f32 v{b+4}, v{b+4}, v{b+6}")
        a.e(f"v_add_f32 v{b}, v{b}, v{b+4}")
        a.e(f"v_cndmask_b32 v{b}, v{vCNT}, v{b}, {sr(sMD,2)}")
        a.e(f"v_mov_b32 v{b+1}, v{b}")
        a.e(f"buffer_atomic_add_f32 v{b+1}, v{vAO}, {sr(sWS,4)}, s{sT+2} offen offset:{WS_ACC+256*m} sc0")
    for m, reg in ((0, vNA), (1, vNB)):
        b = vW + 8 * m
        l = a.newlabel("nst")
        if m == 0:
            a.e("s_waitcnt vmcnt(0)")
        a.e(f"v_mov_b32_dpp v{b+2}, v{b+1} row_newbcast:0 {DPPF}")
        a.e(f"v_add_f32 v{b}, v{b}, v{b+1}")
        a.e(f"v_cmp_eq_f32 vcc, 0x427c0000, v{b+2}")
        a.e(f"v_cvt_pk_bf16_f32 v{b}, v{b}, v{b}")
        a.e(f"v_lshrrev_b32 v{b+3}, 1, v{reg}")
        a.e(f"s_and_b64 exec, vcc, {sr(sMD,2)}")
        a.e(f"s_cbranch_execz {l}")
        a.e(f"buffer_store_short v{b}, v{b+3}, {sr(sO,4)}, s{sT+3} offen")
        a.label(l)
        a.e("s_mov_b64 exec, -1")
    a.label("L_end")
    if inst:
        a.e("s_mov_b64 exec, -1")
        stamp(7)
        a.e(f"s_getreg_b32 s{sT+1}, hwreg(HW_REG_XCC_ID)")
        a.e(f"s_getreg_b32 s{sT+2}, hwreg(HW_REG_HW_ID)")
        a.e("s_waitcnt lgkmcnt(0)")
        a.e(f"v_mov_b32 v{vU}, 0")
        for k in range(8):
            a.e(f"v_writelane_b32 v{vU}, s{sST+2*k}, {k}")
        a.e(f"v_writelane_b32 v{vU}, s{sT+1}, 14")
        a.e(f"v_writelane_b32 v{vU}, s{sT+2}, 15")
        a.e(f"s_mul_i32 s{sT}, s{sWG}, {W}")
        a.e(f"s_add_u32 s{sT}, s{sT}, s{sWAVE}")
        a.e(f"s_lshl_b32 s{sT}, s{sT}, 6")
        a.e(f"s_add_u32 s{sT}, s{sT}, {WS_ST}")
        a.e(f"v_lshlrev_b32 v{vU+1}, 2, v{vLANE}")
        a.e("s_mov_b64 exec, 0xffff")
        a.e(f"buffer_store_dword v{vU}, v{vU+1}, {sr(sWS,4)}, s{sT} offen")
        if args.dbgt:
            a.e(f"s_cmp_lg_u32 s{sWAVE}, 0")
            a.e("s_cbranch_scc1 L_exit")
            a.e(f"s_not_b32 s{sT+1}, s{sST}")
            a.e(f"s_not_b32 s{sT+2}, s{sST+14}")
            a.e(f"v_mov_b32 v{vU+2}, 0")
            a.e(f"v_mov_b32 v{vU+3}, 0")
            items = [(1, sT+1), (2, sST+6), (3, sST+8), (12, sST+10), (13, sST+14), (14, sT+2), (15, sST+2)]
            for k, (dw, sreg) in enumerate(items):
                a.e(f"v_writelane_b32 v{vU+2}, s{sreg}, {k}")
                a.e(f"s_mov_b32 s{sT+3}, {dw*4}")
                a.e(f"v_writelane_b32 v{vU+3}, s{sT+3}, {k}")
            a.e("s_mov_b64 exec, 0x7f")
            a.e(f"buffer_atomic_umax v{vU+2}, v{vU+3}, {sr(sDBG,4)}, 0 offen")
    a.label("L_exit")
    a.e("s_endpgm")

    acc = (VGPRS + 3) // 4 * 4
    a.raw('.section .rodata,"a"')
    a.raw(".p2align 6")
    a.raw(f""".amdhsa_kernel {KNAME}
  .amdhsa_next_free_vgpr {VGPRS}
  .amdhsa_next_free_sgpr {SGPRS}
  .amdhsa_accum_offset {acc}
  .amdhsa_group_segment_fixed_size 0
  .amdhsa_kernarg_size 104
  .amdhsa_user_sgpr_count 2
  .amdhsa_user_sgpr_kernarg_segment_ptr 1
  .amdhsa_system_sgpr_workgroup_id_x 1
  .amdhsa_float_denorm_mode_32 3
.end_amdhsa_kernel
""")
    return finalize(a.text(), args)


if __name__ == "__main__":
    ap = argparse.ArgumentParser()
    ap.add_argument("-o", default=f"cdna_kernels/{NAME}.s")
    ap.add_argument("--NP", type=int, default=28)
    ap.add_argument("--D", type=int, default=6)
    ap.add_argument("--lr", type=int, default=2)
    ap.add_argument("--pat", default="0123568974+44")
    ap.add_argument("--bar", type=int, default=2)
    ap.add_argument("--hbar", type=int, default=1)
    ap.add_argument("--wo0", type=int, default=0)
    ap.add_argument("--wo1", type=int, default=0)
    ap.add_argument("--wog", type=int, default=2)
    ap.add_argument("--head", default="QKSQKQKQKQK")
    ap.add_argument("--head2", default="KK")
    ap.add_argument("--K0", type=int, default=8)
    ap.add_argument("--K1", type=int, default=16)
    ap.add_argument("--g_set", type=int, default=1)
    ap.add_argument("--g_load", type=int, default=12)
    ap.add_argument("--g_check", type=int, default=12)
    ap.add_argument("--inst", type=int, default=0)
    ap.add_argument("--DT", type=int, default=4)
    ap.add_argument("--fc", type=int, default=1)
    ap.add_argument("--g_pub", type=int, default=0)
    ap.add_argument("--pre", type=int, default=0)
    ap.add_argument("--slow", type=int, default=0)
    ap.add_argument("--polbit", type=int, default=0)
    ap.add_argument("--scr", type=int, default=0)
    ap.add_argument("--pol", default="nnnnnnnn")
    ap.add_argument("--kh", default="nt")
    ap.add_argument("--wh", default="nt")
    ap.add_argument("--map", type=int, default=4)
    ap.add_argument("--xm", default="0")
    ap.add_argument("--DS", type=int, default=3)
    ap.add_argument("--theta", type=int, default=5)
    ap.add_argument("--fg0", type=int, default=9)
    ap.add_argument("--fg1", type=int, default=28)
    ap.add_argument("--fp", type=int, default=3)
    ap.add_argument("--g_fin", type=int, default=14)
    ap.add_argument("--g_zset", type=int, default=3)
    ap.add_argument("--g_zld", type=int, default=7)
    ap.add_argument("--boost", type=int, default=0)
    ap.add_argument("--b0", type=int, default=36)
    ap.add_argument("--b1", type=int, default=56)
    ap.add_argument("--rot", type=int, default=0)
    ap.add_argument("--cu", type=int, default=1)
    ap.add_argument("--Dh", type=int, default=0)
    ap.add_argument("--wot", type=int, default=2)
    ap.add_argument("--noq", type=int, default=0)
    ap.add_argument("--noo", type=int, default=0)
    ap.add_argument("--nosync", type=int, default=0)
    ap.add_argument("--dbgt", type=int, default=0)
    args = ap.parse_args()
    open(args.o, "w").write(gen(args))
```
